```python
import torch

def _softmax(x, axis=-1):
    return torch.softmax(x, dim=axis)
def _gelu(x):
    return torch.nn.functional.gelu(x, approximate="tanh")
def _silu(x):
    return torch.nn.functional.silu(x)
def _sigmoid(x):
    return torch.sigmoid(x)
def _layernorm(x, axis=-1, eps=1e-5):
    m = x.mean(dim=axis, keepdim=True)
    v = x.var(dim=axis, keepdim=True, unbiased=False)
    return (x - m) / torch.sqrt(v + eps)
def _scatter_add(tgt, idx, src, axis=0):
    return tgt.clone().index_add_(axis, idx, src)
def _segment_sum(src, seg, n):
    out = torch.zeros((n,) + src.shape[1:], dtype=src.dtype)
    return out.index_add_(0, seg, src)
def _pad(x, pw):
    flat = tuple(v for pair in reversed(pw) for v in pair)
    return torch.nn.functional.pad(x, flat)

kernel_name = 'sequential_preLN__softmax_full_mha__swiglu_ffn__prompt'

def setup_inputs():

    _w = (lambda a: (lambda t: t.to(torch.bfloat16) if t.is_floating_point() else t)(torch.as_tensor(a)))
    def _A_setup():
        B, S, D = 1, 2048, 576
        return {
            "x": _w((lambda *s: torch.randn(*s, dtype=torch.bfloat16) * 0.05)(B, S, D)),
            "wqkv": _w((lambda *s: torch.randn(*s, dtype=torch.bfloat16) * 0.05)(D, 3 * D)),
            "wo": _w((lambda *s: torch.randn(*s, dtype=torch.bfloat16) * 0.05)(D, D)),
        }
    _A_in = _A_setup()

    def _B_setup():
        B, S, D, F = 1, 2048, 576, 4608
        return {
            "x": _w((lambda *s: torch.randn(*s, dtype=torch.bfloat16) * 0.05)(B, S, D)),
            "w_gate": _w((lambda *s: torch.randn(*s, dtype=torch.bfloat16) * 0.05)(D, F)),
            "w_up": _w((lambda *s: torch.randn(*s, dtype=torch.bfloat16) * 0.05)(D, F)),
            "w_down": _w((lambda *s: torch.randn(*s, dtype=torch.bfloat16) * 0.05)(F, D)),
        }
    _B_in = _B_setup()

    return {
        "A_x": _A_in["x"],
        "A_wqkv": _A_in["wqkv"],
        "A_wo": _A_in["wo"],
        "B_x": _B_in["x"],
        "B_w_gate": _B_in["w_gate"],
        "B_w_up": _B_in["w_up"],
        "B_w_down": _B_in["w_down"],
    }

def reference(A_x, A_wqkv, A_wo, B_x, B_w_gate, B_w_up, B_w_down):
    def _A_ref(x, wqkv, wo):
        B, S, D = x.shape
        H = 32; Dh = D // H
        qkv = (lambda x, *d: x.permute(*d))((x @ wqkv).reshape(B, S, 3, H, Dh), 2, 0, 3, 1, 4)
        q, k, v = qkv[0], qkv[1], qkv[2]
        scale = Dh ** -0.5
        scores = torch.einsum("bhqd,bhkd->bhqk", q, k) * scale
        p = _softmax(scores, axis=-1)
        o = torch.einsum("bhqk,bhkd->bhqd", p, v)
        return (lambda x, *d: x.permute(*d))(o, 0, 2, 1, 3).reshape(B, S, D) @ wo

    def _B_ref(x, w_gate, w_up, w_down):
        g = _silu(x @ w_gate)
        u = x @ w_up
        return (g * u) @ w_down

    x = A_x
    h = x + _A_ref(_layernorm(x, axis=-1), A_wqkv, A_wo)
    h2 = h + _B_ref(_layernorm(h, axis=-1), B_w_gate, B_w_up, B_w_down)
    return h2
```

```python
import re

REG_RE = re.compile(r'\b([vas])(\d+)\b|\b([vas])\[(\d+):(\d+)\]')

def regs_of(tok):
    out = set()
    t = tok.strip()
    for m in REG_RE.finditer(t):
        if m.group(1):
            out.add((m.group(1), int(m.group(2))))
        else:
            for i in range(int(m.group(4)), int(m.group(5)) + 1):
                out.add((m.group(3), i))
    if re.search(r'\bvcc\b', t): out |= {('s', 106), ('s', 107)}
    if re.search(r'\bvcc_lo\b', t): out.add(('s', 106))
    if re.search(r'\bvcc_hi\b', t): out.add(('s', 107))
    if re.search(r'\bexec\b', t): out |= {('s', 126), ('s', 127)}
    if re.search(r'\bm0\b', t): out.add(('s', 124))
    return out

TRANS = ('v_exp_f32', 'v_log_f32', 'v_rcp_f32', 'v_rsq_f32', 'v_sqrt_f32', 'v_sin_f32', 'v_cos_f32', 'v_rcp_iflag_f32')
RMW = ('v_fmac_f32', 'v_dot2c_f32_bf16', 'v_pk_fmac_f16')

def mfma_passes(op):
    if '32x32x16' in op or '32x32x8' in op: return 8
    if '16x16x32' in op or '16x16x16' in op: return 4
    if '32x32x4_2b' in op: return 16
    raise ValueError(op)

class Ins:
    __slots__ = ('text', 'op', 'ops', 'dst', 'src', 'kind', 'mods', 'A', 'B', 'C', 'label', 'target', 'data')
    def __init__(self, text):
        self.text = text
        self.label = None; self.target = None
        self.dst = set(); self.src = set(); self.kind = 'other'; self.op = ''
        self.A = self.B = self.C = set(); self.data = set()
        t = text.split(';')[0].strip()
        if not t:
            self.kind = 'none'; return
        if t.endswith(':'):
            self.kind = 'label'; self.label = t[:-1]; return
        if t.startswith('.'):
            self.kind = 'none'; return
        parts = t.split(None, 1)
        op = parts[0]; self.op = op
        rest = parts[1] if len(parts) > 1 else ''
        ops = []; depth = 0; cur = ''
        for ch in rest:
            if ch in '[(': depth += 1
            if ch in '])': depth -= 1
            if ch == ',' and depth == 0:
                ops.append(cur.strip()); cur = ''
            else: cur += ch
        if cur.strip(): ops.append(cur.strip())
        self.ops = ops
        base = re.sub(r'_(e32|e64|dpp|sdwa)$', '', op)
        R = [regs_of(o) for o in ops]
        allsrc = lambda lst: set().union(*lst) if lst else set()
        if op.startswith('v_mfma'):
            self.kind = 'mfma'
            self.dst = R[0]; self.A = R[1]; self.B = R[2]; self.C = R[3]
            self.src = R[1] | R[2] | R[3]
        elif op.startswith('v_'):
            self.kind = 'valu'
            if base.startswith('v_cmp'):
                self.dst = R[0]; self.src = allsrc(R[1:])
            elif base in ('v_readfirstlane_b32', 'v_readlane_b32'):
                self.dst = R[0]; self.src = allsrc(R[1:])
            elif base.startswith('v_permlane') and 'swap' in base:
                self.dst = R[0] | R[1]; self.src = R[0] | R[1]
            elif base in ('v_add_co_u32', 'v_sub_co_u32', 'v_addc_co_u32'):
                self.dst = R[0] | R[1]; self.src = allsrc(R[2:])
            elif base == 'v_nop':
                pass
            else:
                self.dst = R[0]; self.src = allsrc(R[1:])
                if base in RMW: self.src |= R[0]
                if 'dpp' in op or 'quad_perm' in rest or 'row_' in rest: self.src |= R[0]
        elif op.startswith('ds_'):
            self.kind = 'ds'
            if op.startswith('ds_read') or op.startswith('ds_bpermute') or op.startswith('ds_swizzle'):
                self.dst = R[0]; self.src = allsrc(R[1:])
            else:
                self.src = allsrc(R); self.data = allsrc(R[1:])
        elif op.startswith('buffer_') or op.startswith('global_'):
            self.kind = 'vmem'
            if op in ('buffer_inv', 'buffer_wbl2'):
                pass
            elif 'load' in op:
                if re.search(r'\blds\b', rest) or 'load_lds' in op:
                    self.src = allsrc(R) | {('s', 124)}; self.kind = 'vmem_lds'
                else:
                    self.dst = R[0]; self.src = allsrc(R[1:])
            elif 'store' in op:
                self.src = allsrc(R)
                self.data = R[0] if op.startswith('buffer_') else R[1]
            elif 'atomic' in op:
                self.src = allsrc(R)
                if re.search(r'\bsc0\b', rest): self.dst = R[0]
        elif op.startswith('s_load') or op.startswith('s_memtime') or op.startswith('s_memrealtime') or op.startswith('s_buffer_load'):
            self.kind = 'smem'; self.dst = R[0]; self.src = allsrc(R[1:])
        elif op.startswith('s_'):
            self.kind = 'salu'
            if op in ('s_branch',) or op.startswith('s_cbranch'):
                self.kind = 'branch'; self.target = ops[0]
            elif op in ('s_waitcnt', 's_nop', 's_barrier', 's_endpgm', 's_setprio', 's_sleep'):
                self.kind = op
            elif op.startswith('s_cmp') or op.startswith('s_bitcmp'):
                self.src = allsrc(R)
            else:
                self.dst = R[0] if R else set(); self.src = allsrc(R[1:])
                if 'saveexec' in op: self.dst |= {('s', 126), ('s', 127)}
        else:
            raise ValueError('unknown instr: ' + text)

    def states(self):
        if self.kind == 's_nop': return int(self.ops[0], 0) + 1
        if self.kind in ('none', 'label'): return 0
        return 1

def is_vreg(r): return r[0] in 'va'

def need(prod, cons):
    n = 0
    base = re.sub(r'_(e32|e64|dpp|sdwa)$', '', prod.op)
    cbase = re.sub(r'_(e32|e64|dpp|sdwa)$', '', cons.op)
    if prod.kind == 'valu':
        pv = {r for r in prod.dst if is_vreg(r)}
        ps = {r for r in prod.dst if r[0] == 's'}
        if pv:
            if cons.kind == 'mfma' and pv & cons.src: n = max(n, 2)
            if cons.kind == 'valu':
                isdpp = 'dpp' in cons.op or 'quad_perm' in cons.text or 'row_' in cons.text
                if isdpp and pv & cons.src: n = max(n, 2)
                if cbase in ('v_readfirstlane_b32', 'v_readlane_b32') and pv & cons.src: n = max(n, 1)
                if cbase.startswith('v_permlane') and pv & cons.src: n = max(n, 2)
            if base in TRANS and pv & cons.src and cbase not in TRANS: n = max(n, 1)
            if base.startswith('v_dot') and (pv & (cons.src | cons.dst)):
                if cbase == base:
                    ab = set().union(*[regs_of(o) for o in cons.ops[1:3]])
                    if pv & ab: n = max(n, 3)
                else: n = max(n, 3)
        if ps:
            if cons.kind in ('vmem', 'vmem_lds') and ps & cons.src: n = max(n, 5)
            if cons.kind == 'valu' and ps & cons.src: n = max(n, 4 if 'lane' in cbase else 2)
            if cons.kind in ('salu', 'branch', 'smem') and ps & cons.src: n = max(n, 1)
            if cons.kind == 'branch' and 'vcc' in cons.op and ps & {('s', 106), ('s', 107)}: n = max(n, 5)
            if ps & {('s', 126), ('s', 127)}: n = max(n, 5)
    if prod.kind == 'salu' and ('s', 124) in prod.dst and cons.kind == 'vmem_lds': n = max(n, 1)
    if prod.kind == 'mfma':
        p = mfma_passes(prod.op)
        if cons.kind == 'mfma':
            if prod.dst & (cons.A | cons.B): n = max(n, p + 4)
            if prod.dst & cons.C:
                if prod.dst == cons.C and mfma_passes(cons.op) == p: n = max(n, 0)
                else: n = max(n, p + 2)
            elif prod.dst & cons.dst:
                n = max(n, p + 2)
        elif cons.kind in ('valu', 'ds', 'vmem', 'vmem_lds'):
            if prod.dst & (cons.src | cons.dst): n = max(n, p + 4)
            if cons.kind == 'valu' and prod.C & cons.dst: n = max(n, p - 1)
    if prod.kind == 'vmem' and prod.data and len(prod.data) >= 3:
        if prod.data & cons.dst: n = max(n, 2 if cons.kind in ('valu', 'mfma') else 1)
    return n

MAXD = 22

def insert_nops(lines):
    ins = [Ins(l) for l in lines]
    changed = True
    rounds = 0
    while changed:
        changed = False; rounds += 1
        assert rounds < 50
        labels = {x.label: i for i, x in enumerate(ins) if x.kind == 'label'}
        inserts = {}
        for i, p in enumerate(ins):
            if p.kind not in ('valu', 'salu', 'mfma', 'vmem'): continue
            stack = [(i + 1, 0)]
            seen = set()
            while stack:
                j, d = stack.pop()
                while j < len(ins) and d < MAXD:
                    if (j, d) in seen: break
                    seen.add((j, d))
                    c = ins[j]
                    if c.kind not in ('none', 'label'):
                        nn = need(p, c)
                        if nn > d:
                            inserts[j] = max(inserts.get(j, 0), nn - d)
                        if c.kind == 's_endpgm': break
                        if c.kind == 'branch':
                            stack.append((labels[c.target], d + 1))
                            if c.op == 's_branch': break
                    d += c.states(); j += 1
        if inserts:
            changed = True
            j0 = min(inserts)
            out = []
            last = -100
            for j, x in enumerate(ins):
                if j in inserts and j - last > MAXD:
                    k = inserts[j]
                    while k > 0:
                        m = min(k, 16)
                        out.append(Ins(f'    s_nop {m-1}')); k -= m
                    last = j
                out.append(x)
            ins = out
    return [x.text for x in ins]

def verify_waits(lines, name=''):
    ins = [Ins(l) for l in lines]
    labels = {x.label: i for i, x in enumerate(ins) if x.kind == 'label'}
    errs = set()
    def run(start, vm, lg, taken, depth):
        j = start
        while j < len(ins):
            c = ins[j]
            if c.kind in ('none', 'label'): j += 1; continue
            if c.kind == 's_endpgm': return
            if c.kind == 's_waitcnt':
                m = re.search(r'vmcnt\((\d+)\)', c.text)
                if m:
                    n = int(m.group(1)); vm = vm[len(vm) - n:] if n < len(vm) else vm
                    if n == 0: vm = []
                m = re.search(r'lgkmcnt\((\d+)\)', c.text)
                if m:
                    n = int(m.group(1))
                    if n == 0: lg = []
                    elif not any(k == 'smem' for k, _ in lg):
                        lg = lg[len(lg) - n:] if n < len(lg) else lg
                j += 1; continue
            touched = c.src | c.dst
            for q in (vm, lg):
                for k, d in q:
                    if d & c.src or (d & c.dst and not (c.kind in ('vmem', 'ds') and k == c.kind)):
                        errs.add(f'{name}: line {j}: "{c.text.strip()}" touches in-flight {sorted(d & touched)[:4]}')
            if c.kind in ('vmem', 'vmem_lds'):
                vm = vm + [('vmem', set(c.dst))]
                if len(vm) > 63: errs.add(f'{name}: line {j}: vmcnt overflow >63')
            elif c.kind == 'ds': lg = lg + [('ds', set(c.dst))]
            elif c.kind == 'smem': lg = lg + [('smem', set(c.dst))]
            if c.kind == 'branch':
                t = labels[c.target]
                if t <= j:
                    cnt = taken.get(j, 0)
                    if cnt < 2:
                        taken = dict(taken); taken[j] = cnt + 1
                        j = t; continue
                    if c.op == 's_branch': return
                else:
                    if c.op == 's_branch': j = t; continue
                    if depth < 6 and (j, 'f') not in taken:
                        t2 = dict(taken); t2[(j, 'f')] = 1
                        run(t, list(vm), list(lg), t2, depth + 1)
            j += 1
    run(0, [], [], {}, 0)
    return sorted(errs)

class K:
    def __init__(self, name):
        self.name = name; self.L = []
        self.nlab = 0
    def __call__(self, s):
        for l in s.split('\n'):
            l = l.strip()
            if l: self.L.append(l if l.endswith(':') else '    ' + l)
    def label(self, base='L'):
        self.nlab += 1
        return f'{self.name}_{base}{self.nlab}'
    def finish(self, vgpr, accum, sgpr=102):
        lines = insert_nops(self.L)
        errs = verify_waits(lines, self.name)
        for e in errs: print('WAITCNT WARNING', e)
        mv = ma = ms = -1
        for l in lines:
            x = Ins(l)
            for f, i in x.src | x.dst:
                if f == 'v': mv = max(mv, i)
                if f == 'a': ma = max(ma, i)
                if f == 's' and i < 102: ms = max(ms, i)
        assert mv < accum, (self.name, mv, accum)
        assert accum + ma + 1 <= vgpr or ma < 0, (self.name, ma)
        assert mv < vgpr
        nn = sum(1 for l in lines if 's_nop' in l)
        print(f'{self.name}: {len(lines)} lines, maxv {mv} maxa {ma} maxs {ms}, s_nops {nn}')
        text = f'.globl {self.name}\n.p2align 8\n.type {self.name},@function\n{self.name}:\n' + '\n'.join(lines) + '\n'
        desc = f'''.p2align 6
.amdhsa_kernel {self.name}
  .amdhsa_next_free_vgpr {vgpr}
  .amdhsa_next_free_sgpr {sgpr}
  .amdhsa_accum_offset {accum}
  .amdhsa_group_segment_fixed_size 0
  .amdhsa_kernarg_size 80
  .amdhsa_user_sgpr_count 2
  .amdhsa_user_sgpr_kernarg_segment_ptr 1
  .amdhsa_system_sgpr_workgroup_id_x 1
.end_amdhsa_kernel
'''
        return text, desc

def vr(a, n=1, f='v'):
    return f'{f}{a}' if n == 1 else f'{f}[{a}:{a+n-1}]'
def sr(a, n=1): return vr(a, n, 's')
def ar(a, n=1): return vr(a, n, 'a')
import struct
def f32bits(x): return struct.unpack('<I', struct.pack('<f', x))[0]
```

```python
from asmlib import *
from layout import *
import math

def srd(k, d, ptr, size):
    k(f's_mov_b32 s{d}, s{ptr}')
    k(f's_and_b32 s{d+1}, s{ptr+1}, 0xffff')
    k(f's_mov_b32 s{d+2}, {size:#x}')
    k(f's_mov_b32 s{d+3}, 0x00020000')

XN_TT = 72 * 544
XN_SZ = 2 * XN_TT
RING = 9 * 2048
K1_LDS = XN_SZ + 4 * RING

def gen_k1():
    k = K('k1_qkv_kernel')
    X, W, WS, WO = 12, 16, 20, 24
    sTB, sCG, sWV, sPR, sONE, sMASK, sT0, sT1, sWOFF, sRB, sCNT, sSC, sREG, sT2 = 28, 29, 30, 31, 32, 33, 34, 35, 36, 37, 38, 39, 40, 41
    vL, vXO, vWO, vXW, vXR, vWR = 1, 2, 3, 4, 5, 6
    XD = 16
    ACC = 96
    WF = 160
    XF = 176
    EO = 192
    T = 200
    done = k.label('done'); side = k.label('side')
    k(f's_cmp_ge_u32 s2, 256')
    k(f's_cbranch_scc1 {done}')
    k('s_load_dwordx4 s[4:7], s[0:1], 0')
    k('s_load_dwordx2 s[8:9], s[0:1], 16')
    k('s_load_dwordx2 s[10:11], s[0:1], 72')
    k(f'v_lshrrev_b32 v{T}, 6, v0')
    k(f'v_and_b32 v{vL}, 63, v0')
    k(f'v_readfirstlane_b32 s{sWV}, v{T}')
    k(f's_and_b32 s{sT0}, s2, 7')
    k(f's_lshr_b32 s{sT1}, s2, 3')
    k(f's_lshr_b32 s{sCG}, s{sT1}, 2')
    k(f's_and_b32 s{sT1}, s{sT1}, 3')
    k(f's_lshl_b32 s{sTB}, s{sT0}, 2')
    k(f's_add_u32 s{sTB}, s{sTB}, s{sT1}')
    k(f's_mov_b32 s{sONE}, 0x3f803f80')
    k(f's_mov_b32 s{sMASK}, 0xffff0000')
    k('s_waitcnt lgkmcnt(0)')
    srd(k, X, 4, 2048 * 1152)
    srd(k, W, 6, 576 * 3456)
    srd(k, WS, 10, WS_END)
    srd(k, WO, 8, 576 * 1152)
    k(f's_cmp_eq_u32 s{sCG}, 7')
    k(f's_cbranch_scc1 {side}')
    k(f's_lshl_b32 s{sPR}, s{sCG}, 2')
    k(f's_add_u32 s{sPR}, s{sPR}, s{sWV}')
    k(f's_lshl_b32 s{sT0}, s{sTB}, 6')
    k(f's_lshl_b32 s{sT1}, s{sWV}, 4')
    k(f's_add_u32 s{sT0}, s{sT0}, s{sT1}')
    k(f's_mul_i32 s{sT2}, s{sT0}, 1152')
    k(f'v_lshrrev_b32 v{T}, 2, v{vL}')
    k(f'v_mul_u32_u24 v{vXO}, 1152, v{T}')
    k(f'v_and_b32 v{T+1}, 3, v{vL}')
    k(f'v_lshl_add_u32 v{vXO}, v{T+1}, 4, v{vXO}')
    for i in range(18):
        k(f'buffer_load_dwordx4 {vr(XD+4*i,4)}, v{vXO}, {sr(X,4)}, s{sT2} offen offset:{64*i}')
    k(f'v_lshrrev_b32 v{T+2}, 5, v{vL}')
    k(f'v_lshlrev_b32 v{T+2}, 2, v{T+2}')
    k(f'v_bfe_u32 v{T+3}, v{vL}, 2, 2')
    k(f'v_add_u32 v{T+2}, v{T+2}, v{T+3}')
    k(f'v_mul_u32_u24 v{vWO}, 3456, v{T+2}')
    k(f'v_bfe_u32 v{T+3}, v{vL}, 4, 1')
    k(f'v_lshl_add_u32 v{vWO}, v{T+3}, 6, v{vWO}')
    k(f'v_lshl_add_u32 v{vWO}, v{T+1}, 4, v{vWO}')
    k(f's_lshl_b32 s{sWOFF}, s{sPR}, 7')
    k(f's_cmp_eq_u32 s{sPR}, 27')
    k(f's_cselect_b32 s{sWOFF}, {OOB:#x}, s{sWOFF}')
    k(f's_sub_u32 s{sWOFF}, s{sWOFF}, {8*3456}')
    k(f's_mul_i32 s{sRB}, s{sWV}, {RING}')
    k(f's_add_u32 s{sRB}, s{sRB}, {XN_SZ}')
    def dma(slot_instr):
        k(f's_add_u32 m0, s{sRB}, {slot_instr*1024}')
        k(f's_add_u32 s{sWOFF}, s{sWOFF}, {8*3456}')
        k(f'buffer_load_dwordx4 v{vWO}, {sr(W,4)}, s{sWOFF} offen lds')
    for i in range(18): dma(i)
    k(f's_lshr_b32 s{sT1}, s{sWV}, 1')
    k(f's_mul_i32 s{sT1}, s{sT1}, {XN_TT}')
    k(f's_and_b32 s{sT2}, s{sWV}, 1')
    k(f's_lshl_b32 s{sT2}, s{sT2}, 8')
    k(f's_add_u32 s{sT1}, s{sT1}, s{sT2}')
    k(f'v_mul_u32_u24 v{vXW}, 544, v{T+1}')
    k(f'v_lshl_add_u32 v{vXW}, v{T}, 4, v{vXW}')
    k(f'v_add_u32 v{vXW}, s{sT1}, v{vXW}')
    k(f'v_lshrrev_b32 v{T+4}, 5, v{vL}')
    k(f'v_and_b32 v{T+5}, 31, v{vL}')
    k(f'v_mul_u32_u24 v{vXR}, 544, v{T+4}')
    k(f'v_lshl_add_u32 v{vXR}, v{T+5}, 4, v{vXR}')
    k(f'v_lshlrev_b32 v{vWR}, 10, v{T+4}')
    k(f'v_bfe_u32 v{T+6}, v{vL}, 2, 2')
    k(f'v_lshl_add_u32 v{vWR}, v{T+6}, 6, v{vWR}')
    k(f'v_lshl_add_u32 v{vWR}, v{T+3}, 5, v{vWR}')
    k(f'v_lshl_add_u32 v{vWR}, v{T+1}, 3, v{vWR}')
    k(f'v_add_u32 v{vWR}, s{sRB}, v{vWR}')
    k(f's_mul_i32 s{sREG}, s{sPR}, 57')
    k(f's_lshr_b32 s{sREG}, s{sREG}, 9')
    k(f's_mul_i32 s{sT1}, s{sREG}, 9')
    k(f's_sub_u32 s{sT1}, s{sPR}, s{sT1}')
    isv = k.label('isv'); addr_done = k.label('addrdone')
    k(f's_cmp_ge_u32 s{sREG}, 2')
    k(f's_cbranch_scc1 {isv}')
    k(f's_lshl_b32 s{sT1}, s{sT1}, 4')
    k(f'v_add_u32 v{T+6}, s{sT1}, v{T+4}')
    for e in range(8):
        G, P, R, A, B = T+7, T+8, T+9, T+10, T+11
        k(f'v_add_u32 v{G}, {2*e}, v{T+6}')
        k(f'v_mul_u32_u24 v{P}, 57, v{G}')
        k(f'v_lshrrev_b32 v{P}, 9, v{P}')
        k(f'v_mul_u32_u24 v{R}, 9, v{P}')
        k(f'v_sub_u32 v{R}, v{G}, v{R}')
        k(f'v_cmp_lt_u32 vcc, 4, v{R}')
        k(f'v_cndmask_b32 v{A}, 0, 1, vcc')
        k(f'v_sub_u32 v{A}, v{R}, v{A}')
        k(f'v_lshrrev_b32 v{B}, 1, v{A}')
        k(f'v_lshl_add_u32 v{B}, v{P}, 2, v{B}')
        k(f'v_lshlrev_b32 v{B}, 15, v{B}')
        k(f'v_and_b32 v{A}, 1, v{A}')
        k(f'v_lshl_add_u32 v{B}, v{A}, 3, v{B}')
        k(f'v_add_u32 v{P}, 64, v{P}')
        k(f'v_lshlrev_b32 v{P}, 15, v{P}')
        k(f'v_cmp_eq_u32 vcc, 4, v{R}')
        k(f'v_cndmask_b32 v{B}, v{B}, v{P}, vcc')
        k(f'v_lshl_add_u32 v{EO+e}, v{T+5}, 4, v{B}')
    k(f's_branch {addr_done}')
    k(f'{isv}:')
    k(f's_lshl_b32 s{sT1}, s{sT1}, 6')
    for ct in range(2):
        C, H, D = T+7, T+8, T+9
        k(f'v_add_u32 v{C}, s{sT1}, v{T+5}')
        if ct: k(f'v_add_u32 v{C}, 32, v{C}')
        k(f'v_mul_u32_u24 v{H}, 3641, v{C}')
        k(f'v_lshrrev_b32 v{H}, 16, v{H}')
        k(f'v_mul_u32_u24 v{D}, 18, v{H}')
        k(f'v_sub_u32 v{D}, v{C}, v{D}')
        k(f'v_mul_u32_u24 v{H}, 73728, v{H}')
        k(f'v_lshl_add_u32 v{H}, v{D}, 4, v{H}')
        k(f'v_mul_u32_u24 v{D}, 288, v{T+4}')
        k(f'v_add_u32 v{EO+ct}, v{H}, v{D}')
    for e in range(2, 8): k(f'v_mov_b32 v{EO+e}, 0')
    k(f'{addr_done}:')
    for i in range(64): k(f'v_mov_b32 v{ACC+i}, 0')
    for i in range(4): k(f'v_mov_b32 v{8+i}, 0')
    for i in range(18):
        if i % 6 == 0: k(f's_waitcnt vmcnt({18 + 18 - (i+6)})')
        for r in range(4):
            x = XD + 4*i + r
            k(f'v_dot2c_f32_bf16 v{8+(r&1)}, s{sONE}, v{x}')
            k(f'v_dot2c_f32_bf16 v{10+(r&1)}, v{x}, v{x}')
    k('v_add_f32 v8, v8, v9')
    k('v_add_f32 v10, v10, v11')
    for qp in ('[1,0,3,2]', '[2,3,0,1]'):
        k(f'v_add_f32_dpp v8, v8, v8 quad_perm:{qp} row_mask:0xf bank_mask:0xf')
        k(f'v_add_f32_dpp v10, v10, v10 quad_perm:{qp} row_mask:0xf bank_mask:0xf')
    k(f'v_mul_f32 v8, {f32bits(1/576):#x}, v8')
    k(f'v_mul_f32 v10, {f32bits(1/576):#x}, v10')
    k(f'v_fma_f32 v10, -v8, v8, v10')
    k(f'v_max_f32 v10, 0, v10')
    k(f'v_add_f32 v10, {f32bits(1e-5):#x}, v10')
    k('v_rsq_f32 v12, v10')
    k('v_mul_f32 v14, v8, v12')
    k('v_mov_b32 v13, v12')
    k('v_sub_f32 v14, 0, v14')
    k('v_mov_b32 v15, v14')
    nomean = k.label('nomean')
    k(f's_cmp_lg_u32 s{sCG}, 0')
    k(f's_cbranch_scc1 {nomean}')
    k(f's_lshl_b32 s{sT1}, s{sT0}, 2')
    k(f's_add_u32 s{sT1}, s{sT1}, {MUX:#x}')
    k(f'v_and_b32 v9, 60, v{vL}')
    k(f'buffer_store_dword v8, v9, {sr(WS,4)}, s{sT1} offen')
    k(f'{nomean}:')
    for i in range(18):
        for r in range(4):
            x = XD + 4*i + r; t = T + 2*r
            k(f'v_lshlrev_b32 v{t}, 16, v{x}')
            k(f'v_and_b32 v{t+1}, s{sMASK}, v{x}')
        for r in range(4):
            t = T + 2*r
            k(f'v_pk_fma_f32 {vr(t,2)}, {vr(t,2)}, v[12:13], v[14:15]')
        for r in range(4):
            x = XD + 4*i + r; t = T + 2*r
            k(f'v_cvt_pk_bf16_f32 v{x}, v{t}, v{t+1}')
        k(f'ds_write_b128 v{vXW}, {vr(XD+4*i,4)} offset:{i*2176}')
    k('s_waitcnt lgkmcnt(0)')
    k('s_barrier')
    k(f's_cmp_eq_u32 s{sPR}, 27')
    k(f's_cbranch_scc1 {done}')
    vloop = k.label('vpath')
    def reads(s, buf):
        for ct in range(2):
            for rd in range(2):
                k(f'ds_read_b64_tr_b16 {vr(WF+8*buf+4*ct+2*rd,2)}, v{vWR} offset:{(s%9)*2048 + (2*rd+ct)*256}')
        for tt in range(2):
            k(f'ds_read_b128 {vr(XF+8*buf+4*tt,4)}, v{vXR} offset:{s*1088 + tt*XN_TT}')
    def gemm(isV):
        k('s_waitcnt vmcnt(16)')
        reads(0, 0)
        k(f's_mov_b32 s{sCNT}, 2')
        loop = k.label('loop')
        k(f'{loop}:')
        for s in range(18):
            buf = s & 1
            k('s_waitcnt vmcnt(14) lgkmcnt(0)')
            reads(s + 1, buf ^ 1)
            j = 0
            for ct in range(2):
                for tt in range(2):
                    a = ACC + 16*(2*ct+tt); wf = vr(WF+8*buf+4*ct,4); xf = vr(XF+8*buf+4*tt,4)
                    if isV: k(f'v_mfma_f32_32x32x16_bf16 {vr(a,16)}, {xf}, {wf}, {vr(a,16)}')
                    else:   k(f'v_mfma_f32_32x32x16_bf16 {vr(a,16)}, {wf}, {xf}, {vr(a,16)}')
                    if j < 2: dma((s % 9)*2 + j)
                    j += 1
        k(f'v_add_u32 v{vXR}, {18*1088}, v{vXR}')
        k(f's_sub_u32 s{sCNT}, s{sCNT}, 1')
        k(f's_cmp_lg_u32 s{sCNT}, 0')
        k(f's_cbranch_scc1 {loop}')
        k('s_waitcnt lgkmcnt(0)')
    k(f's_cmp_ge_u32 s{sREG}, 2')
    k(f's_cbranch_scc1 {vloop}')
    gemm(False)
    cq = math.log2(math.e) / math.sqrt(18.0)
    k(f's_cmp_eq_u32 s{sREG}, 0')
    k(f's_cselect_b32 s{sSC}, {f32bits(cq):#x}, 1.0')
    k(f's_cselect_b32 s{sT1}, {QI:#x}, {KI:#x}') if QI else k(f's_cselect_b32 s{sT1}, 0, {KI:#x}')
    k(f's_lshl_b32 s{sT2}, s{sTB}, 10')
    k(f's_add_u32 s{sT1}, s{sT1}, s{sT2}')
    for ct in range(2):
        for tt in range(2):
            a = ACC + 16*(2*ct+tt)
            for i in range(16): k(f'v_mul_f32 v{a+i}, s{sSC}, v{a+i}')
            for g in range(4):
                k(f'v_cvt_pk_bf16_f32 v{a+4*g}, v{a+4*g}, v{a+4*g+1}')
                k(f'v_cvt_pk_bf16_f32 v{a+4*g+1}, v{a+4*g+2}, v{a+4*g+3}')
                k(f'buffer_store_dwordx2 {vr(a+4*g,2)}, v{EO+4*ct+g}, {sr(WS,4)}, s{sT1} offen offset:{512*tt}')
    k('s_endpgm')
    k(f'{vloop}:')
    gemm(True)
    k(f's_mul_i32 s{sT1}, s{sTB}, 2304')
    k(f's_add_u32 s{sT1}, s{sT1}, {VT:#x}')
    for ct in range(2):
        for tt in range(2):
            a = ACC + 16*(2*ct+tt)
            for t in range(2):
                for i in range(4):
                    k(f'v_cvt_pk_bf16_f32 v{a+8*t+i}, v{a+8*t+2*i}, v{a+8*t+2*i+1}')
                k(f'buffer_store_dwordx4 {vr(a+8*t,4)}, v{EO+ct}, {sr(WS,4)}, s{sT1} offen offset:{1152*tt+576*t}')
    k('s_endpgm')
    k(f'{side}:')
    k(f's_lshl_b32 s{sT0}, s{sTB}, 2')
    k(f's_add_u32 s{sT0}, s{sT0}, s{sWV}')
    k(f's_cmp_ge_u32 s{sT0}, 72')
    k(f's_cbranch_scc1 {done}')
    k(f'v_lshrrev_b32 v2, 3, v{vL}')
    k(f'v_and_b32 v3, 7, v{vL}')
    ext = k.label('ext'); rowd = k.label('rowd')
    k(f's_cmp_ge_u32 s{sT0}, 64')
    k(f's_cbranch_scc1 {ext}')
    k(f's_lshr_b32 s{sT1}, s{sT0}, 1')
    k(f's_mul_i32 s{sT1}, s{sT1}, 18')
    k(f's_and_b32 s{sT2}, s{sT0}, 1')
    k(f's_lshl_b32 s{sT2}, s{sT2}, 2')
    k(f's_add_u32 s{sT1}, s{sT1}, s{sT2}')
    k(f'v_lshrrev_b32 v4, 2, v2')
    k(f'v_lshlrev_b32 v4, 3, v4')
    k(f'v_and_b32 v5, 3, v2')
    k(f'v_add3_u32 v4, v4, v5, s{sT1}')
    k(f's_branch {rowd}')
    k(f'{ext}:')
    k(f's_sub_u32 s{sT1}, s{sT0}, 64')
    k(f's_mul_i32 s{sT1}, s{sT1}, 72')
    k(f's_add_u32 s{sT1}, s{sT1}, 16')
    k(f'v_lshrrev_b32 v4, 1, v2')
    k(f'v_mul_u32_u24 v4, 18, v4')
    k(f'v_and_b32 v5, 1, v2')
    k(f'v_add3_u32 v4, v4, v5, s{sT1}')
    k(f'{rowd}:')
    k(f'v_mul_u32_u24 v4, 1152, v4')
    k(f'v_lshl_add_u32 v4, v3, 4, v4')
    for i in range(9):
        k(f'buffer_load_dwordx4 {vr(XD+4*i,4)}, v4, {sr(WO,4)}, 0 offen offset:{128*i}')
    k('v_mov_b32 v8, 0')
    k('v_mov_b32 v9, 0')
    k('s_waitcnt vmcnt(0)')
    for r in range(36):
        k(f'v_dot2c_f32_bf16 v{8+(r&1)}, s{sONE}, v{XD+r}')
    k('v_add_f32 v8, v8, v9')
    for qp in ('quad_perm:[1,0,3,2]', 'quad_perm:[2,3,0,1]', 'row_half_mirror'):
        k(f'v_add_f32_dpp v8, v8, v8 {qp} row_mask:0xf bank_mask:0xf')
    k(f'v_mul_f32 v8, {f32bits(1/576):#x}, v8')
    k('v_cvt_pk_bf16_f32 v9, v8, v8')
    k('v_lshlrev_b32 v10, 16, v9')
    k('v_sub_f32 v10, v8, v10')
    k('v_cvt_pk_bf16_f32 v10, v10, v10')
    k(f's_lshl_b32 s{sT1}, s{sT0}, 5')
    k(f's_add_u32 s{sT1}, s{sT1}, {RM:#x}')
    k('v_lshlrev_b32 v2, 1, v2')
    k(f'buffer_store_short v9, v2, {sr(WS,4)}, s{sT1} offen')
    k(f'buffer_store_short v10, v2, {sr(WS,4)}, s{sT1} offen offset:16')
    k(f'{done}:')
    k('s_endpgm')
    return k.finish(vgpr=216, accum=216), (256, 256, K1_LDS)
```

```python
from asmlib import *
from layout import *
from k1 import srd

K2_LDS = 8 * 12288
BIAS = 16.0

def gen_k2():
    k = K('k2_attn_kernel')
    WS, SA, SB = 12, 16, 20
    sWV, sHD, sQB, sKQ, sQH, sT0, sT1, sT2, sKM, sV, sKX, sIT, sQ, sQX, sDI = 24, 25, 26, 27, 28, 29, 30, 31, 32, 33, 34, 35, 36, 37, 38
    sVM = 40
    sH0 = 42
    sLB, sTYPE, sSRC, sSRC2, sDST, sDS1, sDS2, sKM0, sKX0, sV0, sTOK = 44, 45, 46, 47, 48, 49, 50, 51, 52, 53, 54
    sPITCH8 = 55
    vL, vQO, vXO, vVO, vLO, vRA, vRB, vRD = 1, 2, 3, 4, 5, 6, 7, 8
    T = 9
    QM = 16
    QXA = 32
    QXB = 40
    O = 48
    S = 112
    P = 144
    KM = 152
    V = 160
    KX = 176
    KXT = 178
    done = k.label('done')
    k('s_cmp_ge_u32 s2, 256')
    k(f's_cbranch_scc1 {done}')
    k('s_load_dwordx2 s[4:5], s[0:1], 72')
    k('s_load_dwordx4 s[56:59], s[0:1], 32')
    k('s_load_dwordx2 s[60:61], s[0:1], 48')
    k('s_load_dwordx2 s[62:63], s[0:1], 16')
    k(f'v_lshrrev_b32 v{T}, 6, v0')
    k(f'v_and_b32 v{vL}, 63, v0')
    k(f'v_readfirstlane_b32 s{sWV}, v{T}')
    k(f's_and_b32 s{sT0}, s2, 7')
    k(f's_lshl_b32 s{sT0}, s{sT0}, 2')
    k(f's_bfe_u32 s{sT1}, s2, 0x20003')
    k(f's_add_u32 s{sHD}, s{sT0}, s{sT1}')
    k(f's_lshr_b32 s{sQB}, s2, 5')
    k(f's_and_b32 s{sKQ}, s{sWV}, 3')
    k(f's_lshr_b32 s{sQH}, s{sWV}, 2')
    k(f'v_lshrrev_b32 v{T}, 5, v{vL}')
    k(f'v_and_b32 v{T+1}, 31, v{vL}')
    k(f'v_lshlrev_b32 v{vXO}, 4, v{T+1}')
    k(f'v_lshl_add_u32 v{vQO}, v{T}, 15, v{vXO}')
    k(f'v_mul_u32_u24 v{vVO}, 288, v{T}')
    k(f'v_add_u32 v{vVO}, v{vVO}, v{vXO}')
    k(f'v_lshlrev_b32 v{vLO}, 4, v{vL}')
    k(f's_mov_b32 s{sVM}, 0x0003ffff')
    k(f's_mov_b32 s{sVM+1}, 0x0003ffff')
    k(f's_mov_b32 s{sH0}, -1')
    k(f's_mov_b32 s{sH0+1}, 0')
    k(f's_lshl_b32 s{sT0}, s{sHD}, 16')
    k(f's_lshr_b32 s{sT1}, s{sHD}, 1')
    k(f's_add_u32 s{sT1}, s{sT1}, 64')
    k(f's_lshl_b32 s{sT1}, s{sT1}, 15')
    k(f's_and_b32 s{sT2}, s{sHD}, 1')
    k(f's_lshl_b32 s{sT2}, s{sT2}, 2')
    k(f's_add_u32 s{sT1}, s{sT1}, s{sT2}')
    k(f's_lshl_b32 s{sTOK}, s{sQB}, 8')
    k(f's_lshl_b32 s{sT2}, s{sQH}, 7')
    k(f's_add_u32 s{sTOK}, s{sTOK}, s{sT2}')
    k(f's_lshl_b32 s{sT2}, s{sTOK}, 4')
    k(f's_add_u32 s{sQ}, s{sT0}, s{sT2}')
    k(f's_add_u32 s{sQX}, s{sT1}, s{sT2}')
    assert QI == 0
    k(f's_add_u32 s{sKM0}, s{sT0}, {KI:#x}')
    k(f's_add_u32 s{sKX0}, s{sT1}, {KI:#x}')
    k(f's_lshl_b32 s{sT2}, s{sKQ}, 13')
    k(f's_add_u32 s{sKM}, s{sKM0}, s{sT2}')
    k(f's_add_u32 s{sKX}, s{sKX0}, s{sT2}')
    k(f's_mul_i32 s{sV0}, s{sHD}, 73728')
    k(f's_add_u32 s{sV0}, s{sV0}, {VT:#x}')
    k(f's_mul_i32 s{sT2}, s{sKQ}, {16*1152}')
    k(f's_add_u32 s{sV}, s{sV0}, s{sT2}')
    k(f's_mul_i32 s{sLB}, s{sWV}, 12288')
    k('s_waitcnt lgkmcnt(0)')
    srd(k, WS, 4, WS_END)
    ws = sr(WS, 4)
    k(f'buffer_load_dwordx4 {vr(KM+4,4)}, v{vQO}, {ws}, s{sKM0} offen')
    k(f'buffer_load_dword v{KX}, v{vXO}, {ws}, s{sKX0} offen')
    for i in range(4):
        k(f'buffer_load_dwordx4 {vr(QM+4*i,4)}, v{vQO}, {ws}, s{sQ} offen offset:{512*i}')
        k(f'buffer_load_dword v{QXA+2*i}, v{vXO}, {ws}, s{sQX} offen offset:{512*i}')
    k(f'buffer_load_dwordx4 {vr(KM,4)}, v{vQO}, {ws}, s{sKM} offen')
    k(f'buffer_load_dword v{KXT}, v{vLO}, {ws}, s{sKX} offen')
    k(f'v_and_b32 v{T+2}, 27, v{T+1}')
    k(f'v_cmp_eq_u32 vcc, 18, v{T+2}')
    k(f'v_mov_b32 v{T+3}, 0x3f803f80')
    k(f'v_cndmask_b32 v{V}, 0, v{T+3}, vcc')
    for i in range(1, 16): k(f'v_mov_b32 v{V+i}, v{V}')
    k(f's_mov_b64 exec, {sr(sVM,2)}')
    k(f'buffer_load_dwordx4 {vr(V,4)}, v{vVO}, {ws}, s{sV} offen')
    k(f'buffer_load_dwordx4 {vr(V+4,4)}, v{vVO}, {ws}, s{sV} offen offset:576')
    k('s_mov_b64 exec, -1')
    k(f's_lshl_b32 s{sT0}, s2, 3')
    k(f's_add_u32 s{sT0}, s{sT0}, s{sWV}')
    lgu = k.label('gu'); ldn = k.label('dn'); lwo = k.label('wo'); lset = k.label('set')
    k(f'v_lshrrev_b32 v{T+2}, 3, v{vL}')
    k(f'v_and_b32 v{T+3}, 7, v{vL}')
    k(f'v_bfe_u32 v{T+4}, v{vL}, 2, 2')
    k(f'v_and_b32 v{T+5}, 3, v{vL}')
    k(f'v_lshrrev_b32 v{T+6}, 4, v{vL}')
    k(f's_cmp_lt_u32 s{sT0}, 1296')
    k(f's_cbranch_scc1 {lgu}')
    k(f'v_lshlrev_b32 v{vRD}, 10, v{T+6}')
    k(f'v_lshl_add_u32 v{vRD}, v{T+4}, 7, v{vRD}')
    k(f'v_lshl_add_u32 v{vRD}, v{T+5}, 3, v{vRD}')
    k(f'v_add_u32 v{vRD}, s{sLB}, v{vRD}')
    k(f's_mov_b32 s{sTYPE}, 1')
    k(f's_cmp_lt_u32 s{sT0}, 1944')
    k(f's_cbranch_scc1 {ldn}')
    srd(k, SA, 62, 576*1152); srd(k, SB, 62, 576*1152)
    k(f's_sub_u32 s{sT0}, s{sT0}, 1944')
    k(f's_cmp_ge_u32 s{sT0}, 81')
    k(f's_cselect_b32 s{sTYPE}, 2, 1')
    k(f's_mul_i32 s{sT1}, s{sT0}, 57')
    k(f's_lshr_b32 s{sT1}, s{sT1}, 9')
    k(f's_mul_i32 s{sT2}, s{sT1}, 9')
    k(f's_sub_u32 s{sT2}, s{sT0}, s{sT2}')
    k(f's_mul_i32 s{sDST}, s{sT2}, {4*18*1024}')
    k(f's_lshl_b32 s{sDS1}, s{sT1}, 11')
    k(f's_add_u32 s{sDST}, s{sDST}, s{sDS1}')
    k(f's_add_u32 s{sDST}, s{sDST}, {WOP:#x}')
    k(f's_mov_b32 s{sDS1}, {18*1024}')
    k(f's_lshl_b32 s{sSRC}, s{sT2}, 7')
    lwx = k.label('wx')
    k(f's_cmp_eq_u32 s{sT1}, 8')
    k(f's_cbranch_scc1 {lwx}')
    k(f'v_lshrrev_b32 v{vRA}, 2, v{T+2}')
    k(f'v_lshlrev_b32 v{vRA}, 3, v{vRA}')
    k(f'v_and_b32 v{vRB}, 3, v{T+2}')
    k(f'v_add_u32 v{vRA}, v{vRA}, v{vRB}')
    k(f'v_mul_u32_u24 v{vRA}, 1152, v{vRA}')
    k(f'v_lshl_add_u32 v{vRA}, v{T+3}, 4, v{vRA}')
    k(f'v_add_u32 v{vRB}, {4*1152}, v{vRA}')
    k(f's_mul_i32 s{sT1}, s{sT1}, {72*1152}')
    k(f's_add_u32 s{sSRC}, s{sSRC}, s{sT1}')
    k(f's_mov_b32 s{sPITCH8}, {18*1152}')
    k(f's_add_u32 s{sSRC2}, s{sSRC}, {36*1152}')
    k(f's_branch {lset}')
    k(f'{lwx}:')
    k(f'v_lshrrev_b32 v{vRA}, 1, v{T+2}')
    k(f'v_mul_u32_u24 v{vRA}, 18, v{vRA}')
    k(f'v_and_b32 v{vRB}, 1, v{T+2}')
    k(f'v_add3_u32 v{vRA}, v{vRA}, v{vRB}, 16')
    k(f'v_mul_u32_u24 v{vRA}, 1152, v{vRA}')
    k(f'v_lshl_add_u32 v{vRA}, v{T+3}, 4, v{vRA}')
    k(f'v_add_u32 v{vRB}, {72*1152}, v{vRA}')
    k(f's_mov_b32 s{sPITCH8}, {144*1152}')
    k(f's_add_u32 s{sSRC2}, s{sSRC}, {288*1152}')
    k(f's_branch {lset}')
    k(f'{ldn}:')
    srd(k, SA, 60, 4608*1152); srd(k, SB, 60, 4608*1152)
    k(f's_sub_u32 s{sT0}, s{sT0}, 1296')
    k(f's_mul_i32 s{sT1}, s{sT0}, 7282')
    k(f's_lshr_b32 s{sT1}, s{sT1}, 16')
    k(f's_mul_i32 s{sT2}, s{sT1}, 9')
    k(f's_sub_u32 s{sT2}, s{sT0}, s{sT2}')
    k(f's_mul_i32 s{sDST}, s{sT2}, {4*144*1024}')
    k(f's_lshl_b32 s{sDS1}, s{sT1}, 11')
    k(f's_add_u32 s{sDST}, s{sDST}, s{sDS1}')
    k(f's_add_u32 s{sDST}, s{sDST}, {WD:#x}')
    k(f's_mov_b32 s{sDS1}, {144*1024}')
    k(f's_lshl_b32 s{sSRC}, s{sT2}, 7')
    k(f's_mul_i32 s{sT1}, s{sT1}, {64*1152}')
    k(f's_add_u32 s{sSRC}, s{sSRC}, s{sT1}')
    k(f'v_mul_u32_u24 v{vRA}, 1152, v{T+2}')
    k(f'v_lshl_add_u32 v{vRA}, v{T+3}, 4, v{vRA}')
    k(f'v_add_u32 v{vRB}, {8*1152}, v{vRA}')
    k(f's_mov_b32 s{sPITCH8}, {16*1152}')
    k(f's_add_u32 s{sSRC2}, s{sSRC}, {32*1152}')
    k(f's_branch {lset}')
    k(f'{lgu}:')
    srd(k, SA, 56, 576*9216); srd(k, SB, 58, 576*9216)
    k(f's_mov_b32 s{sTYPE}, 0')
    k(f's_mul_i32 s{sT1}, s{sT0}, 14564')
    k(f's_lshr_b32 s{sT1}, s{sT1}, 20')
    k(f's_mul_i32 s{sT2}, s{sT1}, 72')
    k(f's_sub_u32 s{sT2}, s{sT0}, s{sT2}')
    k(f's_mul_i32 s{sDST}, s{sT2}, {4*36*1024}')
    k(f's_lshl_b32 s{sDS1}, s{sT1}, 11')
    k(f's_add_u32 s{sDST}, s{sDST}, s{sDS1}')
    k(f's_add_u32 s{sDST}, s{sDST}, {WGU:#x}')
    k(f's_mov_b32 s{sDS1}, {36*1024}')
    k(f's_lshl_b32 s{sSRC}, s{sT2}, 7')
    k(f's_mul_i32 s{sT1}, s{sT1}, {32*9216}')
    k(f's_add_u32 s{sSRC}, s{sSRC}, s{sT1}')
    k(f's_mov_b32 s{sSRC2}, s{sSRC}')
    k(f'v_mul_u32_u24 v{vRA}, 9216, v{T+2}')
    k(f'v_lshl_add_u32 v{vRA}, v{T+3}, 4, v{vRA}')
    k(f'v_add_u32 v{vRB}, {8*9216}, v{vRA}')
    k(f's_mov_b32 s{sPITCH8}, {16*9216}')
    k(f'v_and_b32 v{vRD}, 1, v{T+6}')
    k(f'v_lshlrev_b32 v{vRD}, 12, v{vRD}')
    k(f'v_lshrrev_b32 v{T+6}, 1, v{T+6}')
    k(f'v_lshl_add_u32 v{vRD}, v{T+6}, 10, v{vRD}')
    k(f'v_lshl_add_u32 v{vRD}, v{T+4}, 7, v{vRD}')
    k(f'v_and_b32 v{T+6}, 1, v{T+5}')
    k(f'v_lshl_add_u32 v{vRD}, v{T+6}, 4, v{vRD}')
    k(f'v_lshrrev_b32 v{T+6}, 1, v{T+5}')
    k(f'v_lshl_add_u32 v{vRD}, v{T+6}, 3, v{vRD}')
    k(f'v_add_u32 v{vRD}, s{sLB}, v{vRD}')
    k(f'{lset}:')
    k(f's_cmp_eq_u32 s{sQH}, 0')
    k(f's_cselect_b32 s{sDI}, 7, 4')
    k(f's_cmp_eq_u32 s{sTYPE}, 2')
    k(f's_cselect_b32 s{sDI}, 99, s{sDI}')
    for i in range(64): k(f'v_mov_b32 v{O+i}, 0')
    for i in range(8): k(f'v_mov_b32 v{P+i}, 0')
    k(f'v_mov_b32 v{KX+1}, 0x3f80')
    k('s_waitcnt vmcnt(4)')
    for i in range(4):
        k(f'v_cndmask_b32 v{QXB+2*i}, v{QXA+2*i}, 0, {sr(sH0,2)}')
        k(f'v_cndmask_b32 v{QXA+2*i}, 0, v{QXA+2*i}, {sr(sH0,2)}')
        k(f'v_mov_b32 v{QXA+2*i+1}, 0')
    for half in range(2):
        for i in (2*half, 2*half+1):
            s = S + 16*(i&1)
            k(f'v_mfma_f32_32x32x8_bf16 {vr(s,16)}, {vr(KX,2)}, {vr(QXA+2*i,2)}, 0')
            k(f'v_mfma_f32_32x32x16_bf16 {vr(s,16)}, {vr(KM+4,4)}, {vr(QM+4*i,4)}, {vr(s,16)}')
        for i in (2*half, 2*half+1):
            s = S + 16*(i&1)
            k(f'v_max3_f32 v{s}, v{s}, v{s+1}, v{s+2}')
            k(f'v_max3_f32 v{s+3}, v{s+3}, v{s+4}, v{s+5}')
            k(f'v_max3_f32 v{s}, v{s}, v{s+6}, v{s+7}')
            k(f'v_max_f32 v{s}, v{s}, v{s+3}')
            k(f'v_mov_b32 v{s+1}, v{s}')
            k(f'v_permlane32_swap_b32 v{s}, v{s+1}')
            k(f'v_max_f32 v{s}, v{s}, v{s+1}')
            k(f'v_sub_f32 v{s}, {f32bits(-BIAS):#x}, v{s}')
            k(f'v_cvt_pk_bf16_f32 v{s}, v{s}, v{s}')
            k(f'v_and_b32 v{s}, 0xffff, v{s}')
            k(f'v_cndmask_b32 v{QXB+2*i+1}, v{s}, 0, {sr(sH0,2)}')
            k(f'v_cndmask_b32 v{QXA+2*i+1}, 0, v{s}, {sr(sH0,2)}')
    k(f'buffer_load_dwordx4 {vr(KM+4,4)}, v{vQO}, {ws}, s{sKM} offen offset:512')
    k('s_waitcnt vmcnt(3)')
    k(f'v_mov_b32 v{KX}, v{KXT}')
    k(f'v_mov_b32 v{S+16+14}, 0')
    k(f'v_mov_b32 v{S+16+15}, 0')
    k(f'v_mfma_f32_32x32x8_bf16 {vr(S,16)}, {vr(KX,2)}, {vr(QXA,2)}, 0')
    k(f'v_mfma_f32_32x32x16_bf16 {vr(S,16)}, {vr(KM,4)}, {vr(QM,4)}, {vr(S,16)}')
    k(f's_mov_b32 s{sIT}, 8')
    k('s_nop 7')
    loop = k.label('loop'); nodma = k.label('nodma')
    k('.p2align 6')
    k(f'{loop}:')
    for u in range(8):
        tl, qi = u >> 2, u & 3
        s = S + 16*(u&1); s2 = S + 16*((u+1)&1)
        pu = (u - 1) & 7; ptl, pqi = pu >> 2, pu & 3
        nu = (u + 1) & 7; ntl, nqi = nu >> 2, nu & 3
        e = lambda i: k(f'v_exp_f32 v{s+i}, v{s+i}')
        c = lambda i: k(f'v_cvt_pk_bf16_f32 v{P+i}, v{s+2*i}, v{s+2*i+1}')
        e(0)
        k(f'v_cvt_pk_bf16_f32 v{P+7}, v{s2+14}, v{s2+15}')
        e(1); e(2)
        k(f'v_mfma_f32_32x32x16_bf16 {vr(O+16*pqi,16)}, {vr(V+8*ptl+4,4)}, {vr(P+4,4)}, {vr(O+16*pqi,16)}')
        if u == 0:
            k(f's_mov_b64 exec, {sr(sVM,2)}')
            k(f'buffer_load_dwordx4 {vr(V+8,4)}, v{vVO}, {ws}, s{sV} offen offset:1152')
            k(f'buffer_load_dwordx4 {vr(V+12,4)}, v{vVO}, {ws}, s{sV} offen offset:{1152+576}')
            k('s_mov_b64 exec, -1')
            k(f'buffer_load_dword v{KXT}, v{vLO}, {ws}, s{sKX} offen offset:1024')
        if u == 4:
            k(f's_mov_b64 exec, {sr(sVM,2)}')
            k(f'buffer_load_dwordx4 {vr(V,4)}, v{vVO}, {ws}, s{sV} offen offset:{2304}')
            k(f'buffer_load_dwordx4 {vr(V+4,4)}, v{vVO}, {ws}, s{sV} offen offset:{2304+576}')
            k('s_mov_b64 exec, -1')
        c(0); e(3); e(4); c(1)
        if u == 7:
            k('s_waitcnt vmcnt(2)')
            k(f'v_mov_b32 v{KX}, v{KXT}')
        e(5)
        if u == 7: e(6)
        qx = (QXB if ntl else QXA) + 2*nqi
        k(f'v_mfma_f32_32x32x8_bf16 {vr(s2,16)}, {vr(KX,2)}, {vr(qx,2)}, 0')
        if u != 7: e(6)
        c(2); e(7)
        if u == 3:
            k('s_waitcnt vmcnt(3)')
        k(f'v_mfma_f32_32x32x16_bf16 {vr(s2,16)}, {vr(KM+4*ntl,4)}, {vr(QM+4*nqi,4)}, {vr(s2,16)}')
        if u == 3:
            k(f'buffer_load_dwordx4 {vr(KM,4)}, v{vQO}, {ws}, s{sKM} offen offset:1024')
        if u == 7:
            k(f'buffer_load_dwordx4 {vr(KM+4,4)}, v{vQO}, {ws}, s{sKM} offen offset:1536')
        e(8); c(3); e(9); e(10); c(4); e(11)
        if u == 0:
            k('s_waitcnt vmcnt(4)')
        if u == 4:
            k('s_waitcnt vmcnt(4)')
        k(f'v_mfma_f32_32x32x16_bf16 {vr(O+16*qi,16)}, {vr(V+8*tl,4)}, {vr(P,4)}, {vr(O+16*qi,16)}')
        if u == 5:
            k(f's_cmp_lg_u32 s{sIT}, s{sDI}')
            k(f's_cbranch_scc1 {nodma}')
            for i in range(8):
                k(f's_add_u32 m0, s{sLB}, {1024*i}')
                src = sSRC if i < 4 else sSRC2
                if i & 3 == 2: k(f's_add_u32 s{src}, s{src}, s{sPITCH8}')
                else: k('s_nop 0')
                k(f'buffer_load_dwordx4 v{vRB if i&1 else vRA}, {sr(SA if i < 4 else SB,4)}, s{src} offen lds')
            k(f'{nodma}:')
        if u == 7:
            k(f's_add_u32 s{sKM}, s{sKM}, 1024')
            k(f's_add_u32 s{sKX}, s{sKX}, 1024')
            k(f's_add_u32 s{sV}, s{sV}, 2304')
            k(f's_sub_u32 s{sIT}, s{sIT}, 1')
            k(f's_cmp_lg_u32 s{sIT}, 0')
        e(12); c(5); e(13); e(14); c(6); e(15)
    k(f's_cbranch_scc1 {loop}')
    k(f'v_cvt_pk_bf16_f32 v{P+7}, v{S+16+14}, v{S+16+15}')
    k(f'v_mfma_f32_32x32x16_bf16 {vr(O+48,16)}, {vr(V+12,4)}, {vr(P+4,4)}, {vr(O+48,16)}')
    norp = k.label('norp'); rpd = k.label('rpd'); rpst = k.label('rpst')
    k('s_waitcnt vmcnt(0)')
    k(f's_cmp_eq_u32 s{sTYPE}, 2')
    k(f's_cbranch_scc1 {norp}')
    k(f's_cmp_eq_u32 s{sTYPE}, 1')
    k(f's_cbranch_scc1 {rpd}')
    for cc in range(4):
        for ks in range(2):
            for rd in range(2):
                k(f'ds_read_b64_tr_b16 {vr(S+8*cc+4*ks+2*rd,2)}, v{vRD} offset:{(16*ks+4*rd)*128 + 32*cc}')
    k(f's_branch {rpst}')
    k(f'{rpd}:')
    for cc in range(4):
        for ks in range(2):
            for rd in range(2):
                k(f'ds_read_b64_tr_b16 {vr(S+8*cc+4*ks+2*rd,2)}, v{vRD} offset:{(32*ks+4*rd)*128 + 32*cc}')
    k(f'{rpst}:')
    for cc in range(4):
        k(f's_waitcnt lgkmcnt({12-4*cc})')
        for ks in range(2):
            k(f'buffer_store_dwordx4 {vr(S+8*cc+4*ks,4)}, v{vLO}, {ws}, s{sDST} offen offset:{1024*ks}')
        k(f's_add_u32 s{sDST}, s{sDST}, s{sDS1}')
    k(f'{norp}:')
    k(f'v_add_u32 v{T}, s{sLB}, v{vLO}')
    for i in range(4):
        for b in range(3):
            k(f'ds_write_b128 v{T}, {vr(O+16*i+4*b,4)} offset:{(3*i+b)*1024}')
    k(f's_mul_i32 s{sT0}, s{sQH}, {4*12288}')
    k(f's_mul_i32 s{sT1}, s{sKQ}, 3072')
    k(f's_add_u32 s{sT0}, s{sT0}, s{sT1}')
    k(f'v_add_u32 v{T}, s{sT0}, v{vLO}')
    k('s_waitcnt lgkmcnt(0)')
    k('s_barrier')
    for src in range(4):
        for b in range(3):
            k(f'ds_read_b128 {vr(O+16*src+4*b,4)}, v{T} offset:{src*12288 + b*1024}')
    k(f's_lshl_b32 s{sT0}, s{sKQ}, 5')
    k(f's_add_u32 s{sTOK}, s{sTOK}, s{sT0}')
    k('s_waitcnt lgkmcnt(6)')
    for i in range(11): k(f'v_add_f32 v{O+i}, v{O+i}, v{O+16+i}')
    k('s_waitcnt lgkmcnt(0)')
    for i in range(11): k(f'v_add_f32 v{O+32+i}, v{O+32+i}, v{O+48+i}')
    for i in range(11): k(f'v_add_f32 v{O+i}, v{O+i}, v{O+32+i}')
    slow = k.label('slow'); fin = k.label('fin')
    k(f'v_add_f32 v{T+1}, v{O}, v{O+1}')
    for i in range(2, 10): k(f'v_add_f32 v{T+1}, v{T+1}, v{O+i}')
    k(f'v_mov_b32 v{T+2}, 0x1f8')
    k(f'v_cmp_class_f32 s[64:65], v{T+1}, v{T+2}')
    k(f'v_cmp_le_f32 vcc, {f32bits(2.0**-24):#x}, v{O+10}')
    k(f's_and_b64 s[64:65], s[64:65], vcc')
    k(f'v_cmp_ge_f32 vcc, {f32bits(2.0**90):#x}, v{O+10}')
    k(f's_and_b64 s[64:65], s[64:65], vcc')
    k(f's_cmp_eq_u64 s[64:65], -1')
    k(f's_cbranch_scc0 {slow}')
    k(f'{fin}:')
    k(f'v_rcp_f32 v{T+1}, v{O+10}')
    k(f's_lshr_b32 s{sT0}, s{sTOK}, 4')
    k(f's_mul_i32 s{sT0}, s{sT0}, {18*1024}')
    k(f's_add_u32 s{sT0}, s{sT0}, {OI:#x}')
    k(f's_lshl_b32 s{sT1}, s{sHD}, 9')
    k(f's_add_u32 s{sT1}, s{sT1}, s{sT0}')
    k(f'v_bfe_u32 v{T+2}, v{vL}, 4, 1')
    k(f'v_mul_u32_u24 v{T+2}, {18*1024}, v{T+2}')
    k(f'v_and_b32 v{T+3}, 15, v{vL}')
    k(f'v_lshl_add_u32 v{T+2}, v{T+3}, 4, v{T+2}')
    k(f'v_lshrrev_b32 v{T+3}, 5, v{vL}')
    k(f'v_lshl_add_u32 v{T+3}, v{T+3}, 8, v{T+2}')
    for i in range(10): k(f'v_mul_f32 v{O+i}, v{O+i}, v{T+1}')
    for i in range(5): k(f'v_cvt_pk_bf16_f32 v{O+16+i}, v{O+2*i}, v{O+2*i+1}')
    k(f'buffer_store_dwordx4 {vr(O+16,4)}, v{T+3}, {ws}, s{sT1} offen')
    k(f's_lshr_b32 s{sT1}, s{sHD}, 2')
    k(f's_lshl_b32 s{sT1}, s{sT1}, 8')
    k(f's_and_b32 s{sT2}, s{sHD}, 3')
    k(f's_lshl_b32 s{sT2}, s{sT2}, 2')
    k(f's_add_u32 s{sT1}, s{sT1}, s{sT2}')
    k(f's_add_u32 s{sT1}, s{sT1}, s{sT0}')
    k(f's_add_u32 s{sT1}, s{sT1}, {16*1024}')
    k(f's_mov_b64 exec, {sr(sH0,2)}')
    k(f'buffer_store_dword v{O+20}, v{T+2}, {ws}, s{sT1} offen')
    k(f'{done}:')
    k('s_endpgm')
    k(f'{slow}:')
    k(f's_lshl_b32 s{sT0}, s{sKQ}, 9')
    k(f's_add_u32 s{sQ}, s{sQ}, s{sT0}')
    k(f's_add_u32 s{sQX}, s{sQX}, s{sT0}')
    k(f'buffer_load_dwordx4 {vr(QM,4)}, v{vQO}, {ws}, s{sQ} offen')
    k(f'buffer_load_dword v{QXA}, v{vXO}, {ws}, s{sQX} offen')
    k(f'v_mov_b32 v{QXA+1}, 0')
    k(f'v_mov_b32 v{T+1}, 0xff800000')
    k('s_waitcnt vmcnt(0)')
    k(f'v_cndmask_b32 v{QXA}, 0, v{QXA}, {sr(sH0,2)}')
    for i in range(16): k(f'v_mov_b32 v{O+i}, 0')
    for ps in range(2):
        lp = k.label('sl')
        k(f's_mov_b32 s{sKM}, s{sKM0}')
        k(f's_mov_b32 s{sKX}, s{sKX0}')
        k(f's_mov_b32 s{sV}, s{sV0}')
        k(f's_mov_b32 s{sIT}, 64')
        k(f'{lp}:')
        k(f'buffer_load_dwordx4 {vr(KM,4)}, v{vQO}, {ws}, s{sKM} offen')
        k(f'buffer_load_dword v{KX}, v{vXO}, {ws}, s{sKX} offen')
        if ps:
            k(f's_mov_b64 exec, {sr(sVM,2)}')
            k(f'buffer_load_dwordx4 {vr(V,4)}, v{vVO}, {ws}, s{sV} offen')
            k(f'buffer_load_dwordx4 {vr(V+4,4)}, v{vVO}, {ws}, s{sV} offen offset:576')
            k('s_mov_b64 exec, -1')
        k('s_waitcnt vmcnt(0)')
        k(f'v_mfma_f32_32x32x8_bf16 {vr(S,16)}, {vr(KX,2)}, {vr(QXA,2)}, 0')
        k(f'v_mfma_f32_32x32x16_bf16 {vr(S,16)}, {vr(KM,4)}, {vr(QM,4)}, {vr(S,16)}')
        if ps == 0:
            for i in range(8): k(f'v_max3_f32 v{T+1}, v{T+1}, v{S+2*i}, v{S+2*i+1}')
        else:
            for i in range(16): k(f'v_sub_f32 v{S+i}, v{S+i}, v{T+1}')
            for i in range(16): k(f'v_exp_f32 v{S+i}, v{S+i}')
            for i in range(8): k(f'v_cvt_pk_bf16_f32 v{P+i}, v{S+2*i}, v{S+2*i+1}')
            k(f'v_mfma_f32_32x32x16_bf16 {vr(O,16)}, {vr(V,4)}, {vr(P,4)}, {vr(O,16)}')
            k(f'v_mfma_f32_32x32x16_bf16 {vr(O,16)}, {vr(V+4,4)}, {vr(P+4,4)}, {vr(O,16)}')
        k(f's_add_u32 s{sKM}, s{sKM}, 512')
        k(f's_add_u32 s{sKX}, s{sKX}, 512')
        k(f's_add_u32 s{sV}, s{sV}, 1152')
        k(f's_sub_u32 s{sIT}, s{sIT}, 1')
        k(f's_cmp_lg_u32 s{sIT}, 0')
        k(f's_cbranch_scc1 {lp}')
        if ps == 0:
            k(f'v_mov_b32 v{T+2}, v{T+1}')
            k(f'v_permlane32_swap_b32 v{T+1}, v{T+2}')
            k(f'v_max_f32 v{T+1}, v{T+1}, v{T+2}')
    k(f's_branch {fin}')
    return k.finish(vgpr=184, accum=184), (256, 512, K2_LDS)
```

```python
from asmlib import *
from layout import *
from k1 import srd

PITCH = 336
RED_W = 64 * PITCH
MU_OFF = 4 * RED_W
K3_LDS = 4 * RED_W + 4 * 64 * 8
K5_LDS = 4 * RED_W

def common_head(k, done, sWV, sTB, sCB, sCT0, sNP, vL, T):
    k('s_cmp_ge_u32 s2, 256')
    k(f's_cbranch_scc1 {done}')
    k(f'v_lshrrev_b32 v{T}, 6, v0')
    k(f'v_and_b32 v{vL}, 63, v0')
    k(f'v_readfirstlane_b32 s{sWV}, v{T}')
    k(f's_and_b32 s{sTB}, s2, 7')
    k(f's_lshl_b32 s{sTB}, s{sTB}, 2')
    k(f's_bfe_u32 s{sCB}, s2, 0x20003')
    k(f's_add_u32 s{sTB}, s{sTB}, s{sCB}')
    k(f's_lshr_b32 s{sCB}, s2, 5')
    k(f's_mul_i32 s{sCT0}, s{sCB}, 5')
    k(f's_lshl_b32 s{sNP}, s{sCB}, 2')
    k(f's_add_u32 s{sNP}, s{sNP}, 4')
    k(f's_min_u32 s{sCT0}, s{sCT0}, s{sNP}')
    k(f's_cmp_lt_u32 s{sCB}, 4')
    k(f's_cselect_b32 s{sNP}, 10, 8')

def stream_offsets(k, vB, vA, vL, sTB, sCT0, sNP, sT0, nks, baseB, baseA):
    k(f's_mul_i32 s{sT0}, s{sTB}, {4*nks*1024}')
    k(f's_add_u32 s{sT0}, s{sT0}, {baseB:#x}')
    k(f'v_lshl_add_u32 v{vB}, v{vL}, 4, s{sT0}')
    for t in range(1, 4): k(f'v_add_u32 v{vB+t}, {t*nks*1024}, v{vB}')
    k(f's_mul_i32 s{sT0}, s{sCT0}, {nks*1024}')
    k(f's_add_u32 s{sT0}, s{sT0}, {baseA:#x}')
    k(f'v_lshl_add_u32 v{vA}, v{vL}, 4, s{sT0}')
    for c in range(1, 4): k(f'v_add_u32 v{vA+c}, {c*nks*1024}, v{vA}')
    k(f's_mov_b32 s{sT0}, {OOB:#x}')
    k(f's_cmp_eq_u32 s{sNP}, 10')
    k(f's_cselect_b32 s{sT0}, {4*nks*1024}, s{sT0}')
    k(f'v_add_u32 v{vA+4}, s{sT0}, v{vA}')

def write_partials(k, accf, vL, sWV, sT0, T):
    k(f's_mul_i32 s{sT0}, s{sWV}, {RED_W}')
    k(f'v_and_b32 v{T}, 15, v{vL}')
    k(f'v_mul_u32_u24 v{T}, {PITCH}, v{T}')
    k(f'v_lshrrev_b32 v{T+1}, 4, v{vL}')
    k(f'v_lshl_add_u32 v{T}, v{T+1}, 4, v{T}')
    k(f'v_add_u32 v{T}, s{sT0}, v{T}')
    for t in range(4):
        for c in range(5):
            k(f'ds_write_b128 v{T}, {accf(t,c)} offset:{16*t*PITCH + 64*c}')

def reduce_piece(k, i, vRA, R):
    for w in range(4):
        for hh in range(2):
            k(f'ds_read_b128 {vr(R+8*w+4*hh,4)}, v{vRA} offset:{w*RED_W + 128*i + 16*hh}')

def sum_piece(k, R):
    for j in range(8): k(f'v_add_f32 v{R+j}, v{R+j}, v{R+8+j}')
    for j in range(8): k(f'v_add_f32 v{R+16+j}, v{R+16+j}, v{R+24+j}')
    for j in range(8): k(f'v_add_f32 v{R+j}, v{R+j}, v{R+16+j}')

def gen_k3():
    k = K('k3_wo_kernel')
    WS, X = 12, 16
    sWV, sTB, sCB, sCT0, sNP, sT0, sT1, sKS, sKS5, sMASK = 24, 25, 26, 27, 28, 29, 30, 31, 32, 33
    vL, vB, vA, vRMo, T = 1, 2, 6, 11, 12
    BUF = 24
    XR = 224
    done = k.label('done')
    k('s_load_dwordx2 s[4:5], s[0:1], 72')
    k('s_load_dwordx2 s[6:7], s[0:1], 0')
    common_head(k, done, sWV, sTB, sCB, sCT0, sNP, vL, T)
    stream_offsets(k, vB, vA, vL, sTB, sCT0, sNP, sT0, 18, OI, WOP)
    k(f's_mul_i32 s{sKS}, s{sWV}, 5')
    k(f's_min_u32 s{sKS}, s{sKS}, 14')
    k(f's_lshl_b32 s{sT1}, s{sKS}, 7')
    k(f's_add_u32 s{sT1}, s{sT1}, {RM:#x}')
    k(f's_lshl_b32 s{sKS}, s{sKS}, 10')
    k(f's_add_u32 s{sKS5}, s{sKS}, 4096')
    k(f's_cmp_lt_u32 s{sWV}, 2')
    k(f's_cselect_b32 s{sKS5}, s{sKS5}, {OOB:#x}')
    k(f'v_and_b32 v{T}, 15, v{vL}')
    k(f'v_min_u32 v{T}, 1, v{T}')
    k(f'v_lshrrev_b32 v{T+1}, 4, v{vL}')
    k(f'v_lshlrev_b32 v{T+1}, 5, v{T+1}')
    k(f'v_lshl_add_u32 v{vRMo}, v{T}, 4, v{T+1}')
    k(f's_mov_b32 s{sMASK}, 0xffff0000')
    k('s_waitcnt lgkmcnt(0)')
    srd(k, WS, 4, WS_END); srd(k, X, 6, 2048*1152)
    ws = sr(WS, 4)
    fb = lambda s, t: BUF + 40*s + 4*t
    fa = lambda s, c: BUF + 40*s + 16 + 4*c
    for s in range(5):
        so, im = (sKS, 1024*s) if s < 4 else (sKS5, 0)
        for t in range(4): k(f'buffer_load_dwordx4 {vr(fb(s,t),4)}, v{vB+t}, {ws}, s{so} offen offset:{im}')
        for c in range(5): k(f'buffer_load_dwordx4 {vr(fa(s,c),4)}, v{vA+c}, {ws}, s{so} offen offset:{im}')
        if s < 4: k(f'buffer_load_dwordx4 {vr(fa(s,5),4)}, v{vRMo}, {ws}, s{sT1} offen offset:{128*s}')
        else:
            k(f's_cmp_lt_u32 s{sWV}, 2')
            k(f's_cselect_b32 s{sT0}, 512, 0')
            k(f's_add_u32 s{sT1}, s{sT1}, s{sT0}')
            k(f'buffer_load_dwordx4 {vr(fa(s,5),4)}, v{vRMo}, {ws}, s{sT1} offen')
    vTok, vQ, vXo, vMX = 16, 17, 18, 19
    k(f'v_lshrrev_b32 v{vTok}, 2, v0')
    k(f'v_and_b32 v{vQ}, 3, v0')
    k(f'v_mul_u32_u24 v{vXo}, 1152, v{vTok}')
    k(f'v_lshl_add_u32 v{vXo}, v{vQ}, 4, v{vXo}')
    k(f's_mul_i32 s{sT0}, s{sTB}, {64*1152}')
    k(f's_lshl_b32 s{sT1}, s{sCT0}, 5')
    k(f's_add_u32 s{sT0}, s{sT0}, s{sT1}')
    for i in range(3): k(f'buffer_load_dwordx4 {vr(XR+4*i,4)}, v{vXo}, {sr(X,4)}, s{sT0} offen offset:{64*i}')
    k(f's_lshl_b32 s{sT1}, s{sTB}, 8')
    k(f's_add_u32 s{sT1}, s{sT1}, {MUX:#x}')
    k(f'v_lshlrev_b32 v20, 2, v{vTok}')
    k(f'buffer_load_dword v{vMX}, v20, {ws}, s{sT1} offen')
    acc = lambda t, c: ar(4*(6*t+c), 4)
    for s in range(5):
        k(f's_waitcnt vmcnt({10*(4-s)+4})')
        for c in range(6):
            for t in range(4):
                k(f'v_mfma_f32_16x16x32_bf16 {acc(t,c)}, {vr(fa(s,c),4)}, {vr(fb(s,t),4)}, {acc(t,c) if s else 0}')
    write_partials(k, acc, vL, sWV, sT0, T)
    k(f's_lshl_b32 s{sT0}, s{sWV}, 9')
    k(f's_add_u32 s{sT0}, s{sT0}, {MU_OFF}')
    k(f'v_lshl_add_u32 v{T+2}, v{vL}, 3, s{sT0}')
    k('s_mov_b64 exec, 0xffff')
    for t in range(4):
        k(f'ds_write_b64 v{T+2}, {ar(4*(6*t+5),2)} offset:{128*t}')
    k('s_mov_b64 exec, -1')
    vRA = T + 3
    k(f'v_mul_u32_u24 v{vRA}, {PITCH}, v{vTok}')
    k(f'v_lshl_add_u32 v{vRA}, v{vQ}, 5, v{vRA}')
    k(f'v_lshlrev_b32 v21, 9, v{vQ}')
    k(f'v_lshl_add_u32 v21, v{vTok}, 3, v21')
    k(f'v_add_u32 v21, {MU_OFF}, v21')
    k('s_waitcnt lgkmcnt(0)')
    k('s_barrier')
    k(f'ds_read_b64 v[22:23], v21')
    R = [BUF, BUF+32, BUF+64]
    reduce_piece(k, 0, vRA, R[0])
    k('s_waitcnt lgkmcnt(8)')
    k('v_add_f32 v22, v22, v23')
    for qp in ('[1,0,3,2]', '[2,3,0,1]'):
        k(f'v_add_f32_dpp v22, v22, v22 quad_perm:{qp} row_mask:0xf bank_mask:0xf')
    k('s_waitcnt vmcnt(0)')
    k(f'v_add_f32 v22, v22, v{vMX}')
    k('v_mov_b32 v23, 0')
    k(f'v_lshrrev_b32 v21, 5, v{vTok}')
    k(f'v_mul_u32_u24 v21, {36*1024}, v21')
    k(f'v_and_b32 v{T}, 31, v{vTok}')
    k(f'v_lshl_add_u32 v21, v{T}, 4, v21')
    k(f'v_lshl_add_u32 v21, v{vQ}, 9, v21')
    k(f's_mul_i32 s{sT0}, s{sTB}, {72*1024}')
    k(f's_lshl_b32 s{sT1}, s{sCT0}, 10')
    k(f's_add_u32 s{sT0}, s{sT0}, s{sT1}')
    k(f's_add_u32 s{sT0}, s{sT0}, {HB:#x}')
    k(f's_add_u32 s{sT1}, s{sT0}, 4096')
    for i in range(3):
        k('s_waitcnt lgkmcnt(0)')
        if i < 2: reduce_piece(k, i+1, vRA, R[i+1])
        r = R[i]
        sum_piece(k, r)
        if i == 2:
            k(f'v_add_u32 v{T}, 8, v{vQ}')
            k(f'v_cmp_gt_u32 vcc, s{sNP}, v{T}')
            k('s_and_saveexec_b64 s[40:41], vcc')
        for j in range(4):
            k(f'v_lshlrev_b32 v{r+8+2*j}, 16, v{XR+4*i+j}')
            k(f'v_and_b32 v{r+9+2*j}, s{sMASK}, v{XR+4*i+j}')
        for j in range(8): k(f'v_add_f32 v{r+j}, v{r+j}, v{r+8+j}')
        for j in range(8): k(f'v_sub_f32 v{r+j}, v{r+j}, v22')
        for j in range(8): k(f'v_fmac_f32 v23, v{r+j}, v{r+j}')
        for j in range(4): k(f'v_cvt_pk_bf16_f32 v{r+16+j}, v{r+2*j}, v{r+2*j+1}')
        if i < 2: k(f'buffer_store_dwordx4 {vr(r+16,4)}, v21, {ws}, s{sT0} offen offset:{2048*i}')
        else:
            k(f'buffer_store_dwordx4 {vr(r+16,4)}, v21, {ws}, s{sT1} offen')
            k('s_mov_b64 exec, -1')
    for qp in ('[1,0,3,2]', '[2,3,0,1]'):
        k(f'v_add_f32_dpp v23, v23, v23 quad_perm:{qp} row_mask:0xf bank_mask:0xf')
    k(f's_lshl_b32 s{sT0}, s{sTB}, 8')
    k(f's_lshl_b32 s{sT1}, s{sCB}, 13')
    k(f's_add_u32 s{sT1}, s{sT1}, s{sT0}')
    k(f's_add_u32 s{sT1}, s{sT1}, {SS:#x}')
    k(f'buffer_store_dword v23, v20, {ws}, s{sT1} offen')
    k(f's_cmp_lg_u32 s{sCB}, 0')
    k(f's_cbranch_scc1 {done}')
    k(f's_add_u32 s{sT0}, s{sT0}, {MU:#x}')
    k(f'buffer_store_dword v22, v20, {ws}, s{sT0} offen')
    k(f'{done}:')
    k('s_endpgm')
    return k.finish(vgpr=240+96, accum=240), (256, 256, K3_LDS)

def gen_k5():
    k = K('k5_down_kernel')
    WS, OUT = 12, 16
    sWV, sTB, sCB, sCT0, sNP, sT0, sT1, sKS, sKS2, sMASK, sIT = 24, 25, 26, 27, 28, 29, 30, 31, 32, 33, 34
    vL, vB, vA, T = 1, 2, 6, 12
    BUF = 24
    HR = 240
    D = 6
    done = k.label('done')
    k('s_load_dwordx2 s[4:5], s[0:1], 72')
    k('s_load_dwordx2 s[6:7], s[0:1], 56')
    common_head(k, done, sWV, sTB, sCB, sCT0, sNP, vL, T)
    stream_offsets(k, vB, vA, vL, sTB, sCT0, sNP, sT0, 144, ACT, WD)
    k(f's_mul_i32 s{sKS}, s{sWV}, {36*1024}')
    k(f's_add_u32 s{sKS2}, s{sKS}, 3072')
    k(f's_mov_b32 s{sMASK}, 0xffff0000')
    k('s_waitcnt lgkmcnt(0)')
    srd(k, WS, 4, WS_END); srd(k, OUT, 6, 2048*1152)
    ws = sr(WS, 4)
    fb = lambda s, t: BUF + 36*s + 4*t
    fa = lambda s, c: BUF + 36*s + 16 + 4*c
    def loads(s):
        so, im = (sKS, 1024*s) if s < 3 else (sKS2, 1024*(s-3))
        out = []
        for c in range(5): out.append(f'buffer_load_dwordx4 {vr(fa(s,c),4)}, v{vA+c}, {ws}, s{so} offen offset:{im}')
        for t in range(4): out.append(f'buffer_load_dwordx4 {vr(fb(s,t),4)}, v{vB+t}, {ws}, s{so} offen offset:{im}')
        return out
    for s in range(D - 1):
        for l in loads(s): k(l)
    acc = lambda t, c: ar(4*(5*t+c), 4)
    for i in range(80): k(f'v_accvgpr_write_b32 a{i}, 0')
    def step(s, pre, wait):
        k(f's_waitcnt vmcnt({wait})')
        j = 0
        for c in range(5):
            for t in range(4):
                k(f'v_mfma_f32_16x16x32_bf16 {acc(t,c)}, {vr(fa(s,c),4)}, {vr(fb(s,t),4)}, {acc(t,c)}')
                if j % 2 == 0 and pre: k(pre.pop(0))
                j += 1
        assert not pre
    k(f's_mov_b32 s{sIT}, 5')
    loop = k.label('loop')
    k(f'{loop}:')
    for s in range(D):
        if s == 1:
            k(f's_add_u32 s{sKS}, s{sKS}, {D*1024}')
            k(f's_add_u32 s{sKS2}, s{sKS2}, {D*1024}')
        step(s, loads((s - 1) % D), 36)
    k(f's_sub_u32 s{sIT}, s{sIT}, 1')
    k(f's_cmp_lg_u32 s{sIT}, 0')
    k(f's_cbranch_scc1 {loop}')
    vTok, vQ, vHo, vMU, vOo = 16, 17, 18, 19, 20
    k(f'v_lshrrev_b32 v{vTok}, 2, v0')
    k(f'v_and_b32 v{vQ}, 3, v0')
    k(f'v_lshrrev_b32 v{vHo}, 5, v{vTok}')
    k(f'v_mul_u32_u24 v{vHo}, {36*1024}, v{vHo}')
    k(f'v_and_b32 v{T}, 31, v{vTok}')
    k(f'v_lshl_add_u32 v{vHo}, v{T}, 4, v{vHo}')
    k(f'v_lshl_add_u32 v{vHo}, v{vQ}, 9, v{vHo}')
    k(f's_mul_i32 s{sT0}, s{sTB}, {72*1024}')
    k(f's_lshl_b32 s{sT1}, s{sCT0}, 10')
    k(f's_add_u32 s{sT0}, s{sT0}, s{sT1}')
    k(f's_add_u32 s{sT0}, s{sT0}, {HB:#x}')
    k(f's_add_u32 s{sT1}, s{sT0}, 4096')
    k(f'v_lshlrev_b32 v21, 2, v{vTok}')
    hl = [f'buffer_load_dwordx4 {vr(HR,4)}, v{vHo}, {ws}, s{sT0} offen',
          f'buffer_load_dwordx4 {vr(HR+4,4)}, v{vHo}, {ws}, s{sT0} offen offset:2048',
          f'buffer_load_dwordx4 {vr(HR+8,4)}, v{vHo}, {ws}, s{sT1} offen']
    step(0, loads(D - 1), 36)
    for l in hl: k(l)
    k(f's_lshl_b32 s{sT1}, s{sTB}, 8')
    k(f's_add_u32 s{sT1}, s{sT1}, {MU:#x}')
    k(f'buffer_load_dword v{vMU}, v21, {ws}, s{sT1} offen')
    for s in range(1, D):
        step(s, [], 9*(D-1-s) + 4)
    write_partials(k, acc, vL, sWV, sT0, T)
    vRA = T + 3
    k(f'v_mul_u32_u24 v{vRA}, {PITCH}, v{vTok}')
    k(f'v_lshl_add_u32 v{vRA}, v{vQ}, 5, v{vRA}')
    k(f'v_mul_u32_u24 v{vOo}, 1152, v{vTok}')
    k(f'v_lshl_add_u32 v{vOo}, v{vQ}, 4, v{vOo}')
    k(f's_mul_i32 s{sT0}, s{sTB}, {64*1152}')
    k(f's_lshl_b32 s{sT1}, s{sCT0}, 5')
    k(f's_add_u32 s{sT0}, s{sT0}, s{sT1}')
    k('s_waitcnt lgkmcnt(0)')
    k('s_barrier')
    R = [BUF, BUF+32, BUF+64]
    reduce_piece(k, 0, vRA, R[0])
    k('s_waitcnt vmcnt(0)')
    for i in range(3):
        k('s_waitcnt lgkmcnt(0)')
        if i < 2: reduce_piece(k, i+1, vRA, R[i+1])
        r = R[i]
        sum_piece(k, r)
        if i == 2:
            k(f'v_add_u32 v{T}, 8, v{vQ}')
            k(f'v_cmp_gt_u32 vcc, s{sNP}, v{T}')
            k('s_and_saveexec_b64 s[40:41], vcc')
        for j in range(4):
            k(f'v_lshlrev_b32 v{r+8+2*j}, 16, v{HR+4*i+j}')
            k(f'v_and_b32 v{r+9+2*j}, s{sMASK}, v{HR+4*i+j}')
        for j in range(8): k(f'v_add_f32 v{r+8+j}, v{r+8+j}, v{vMU}')
        for j in range(8): k(f'v_add_f32 v{r+j}, v{r+j}, v{r+8+j}')
        for j in range(4): k(f'v_cvt_pk_bf16_f32 v{r+16+j}, v{r+2*j}, v{r+2*j+1}')
        k(f'buffer_store_dwordx4 {vr(r+16,4)}, v{vOo}, {sr(OUT,4)}, s{sT0} offen offset:{64*i}')
    k(f'{done}:')
    k('s_endpgm')
    return k.finish(vgpr=252+80, accum=252), (256, 256, K5_LDS)
```

```python
from asmlib import *
from layout import *
from k1 import srd
import math

CH = 36 * 1024
K4_LDS = 4 * CH

def gen_k4():
    k = K('k4_gateup_kernel')
    WS = 12
    sWV, sTB, sFS, sT0, sT1, sW, sWEND, sM0, sHB, sHB2, sACT, sACT2, sIT, sRD = 24, 25, 26, 27, 28, 29, 30, 31, 32, 33, 34, 35, 36, 37
    vL, vLO, vRD, vRN, vST, T = 1, 2, 3, 4, 5, 6
    C1, VV = 8, 10
    WF = 12
    E = 28
    HV = 60
    ACC = 92
    done = k.label('done')
    def hb(ks, tt):
        i = 2*ks + tt
        return ar(4*i, 4) if i < 64 else vr(HV + 4*(i-64), 4)
    k('s_cmp_ge_u32 s2, 256')
    k(f's_cbranch_scc1 {done}')
    k('s_load_dwordx2 s[4:5], s[0:1], 72')
    k(f'v_lshrrev_b32 v{T}, 6, v0')
    k(f'v_and_b32 v{vL}, 63, v0')
    k(f'v_readfirstlane_b32 s{sWV}, v{T}')
    k(f's_and_b32 s{sFS}, s2, 7')
    k(f's_lshl_b32 s{sFS}, s{sFS}, 2')
    k(f's_bfe_u32 s{sT0}, s2, 0x20003')
    k(f's_add_u32 s{sFS}, s{sFS}, s{sT0}')
    k(f's_lshr_b32 s{sTB}, s2, 5')
    k(f'v_lshlrev_b32 v{vLO}, 4, v{vL}')
    k(f's_mul_i32 s{sW}, s{sFS}, {9*CH}')
    k(f's_add_u32 s{sW}, s{sW}, {WGU:#x}')
    k(f's_add_u32 s{sWEND}, s{sW}, {9*CH}')
    k(f's_mul_i32 s{sM0}, s{sWV}, {9*1024}')
    k(f's_add_u32 s{sW}, s{sW}, s{sM0}')
    k(f's_lshl_b32 s{sT0}, s{sTB}, 3')
    k(f's_lshl_b32 s{sT1}, s{sWV}, 1')
    k(f's_add_u32 s{sT0}, s{sT0}, s{sT1}')
    k(f's_mul_i32 s{sHB}, s{sT0}, {CH}')
    k(f's_add_u32 s{sHB}, s{sHB}, {HB:#x}')
    k(f's_add_u32 s{sHB2}, s{sHB}, {CH}')
    k(f's_mul_i32 s{sACT}, s{sT0}, {2*147456}')
    k(f's_mul_i32 s{sT1}, s{sFS}, {9*512}')
    k(f's_add_u32 s{sACT}, s{sACT}, s{sT1}')
    k(f's_add_u32 s{sACT}, s{sACT}, {ACT:#x}')
    k(f's_add_u32 s{sACT2}, s{sACT}, {2*147456}')
    k(f's_lshl_b32 s{sT0}, s{sT0}, 7')
    k(f's_add_u32 s{sT0}, s{sT0}, {SS:#x}')
    k(f'v_and_b32 v{T}, 31, v{vL}')
    k(f'v_lshlrev_b32 v{T}, 2, v{T}')
    k('s_waitcnt lgkmcnt(0)')
    srd(k, WS, 4, WS_END)
    ws = sr(WS, 4)
    def dma_list():
        out = []
        for i in range(9):
            pre = []
            if i % 4 == 0:
                pre.append(f's_add_u32 m0, s{sM0}, {1024*i}')
                pre.append(f's_add_u32 s{sT1}, s{sW}, {1024*i}')
            out.append(pre + [f'buffer_load_dwordx4 v{vLO}, {ws}, s{sT1} offen offset:{1024*(i%4)} lds'])
        out.append([f's_add_u32 s{sW}, s{sW}, {CH}',
                    f's_cmp_ge_u32 s{sW}, s{sWEND}',
                    f's_cselect_b32 s{sW}, {OOB:#x}, s{sW}',
                    f's_add_u32 s{sM0}, s{sM0}, {CH}',
                    f's_cmp_ge_u32 s{sM0}, {4*CH}',
                    f's_cselect_b32 s{sT1}, {4*CH}, 0',
                    f's_sub_u32 s{sM0}, s{sM0}, s{sT1}'])
        return out
    def emit(groups):
        for g in groups:
            for l in g: k(l)
    def hbload(ks):
        out = []
        if ks % 4 == 0 and ks:
            out += [f's_add_u32 s{sHB}, s{sHB}, 4096', f's_add_u32 s{sHB2}, s{sHB2}, 4096']
        out += [f'buffer_load_dwordx4 {hb(ks,0)}, v{vLO}, {ws}, s{sHB} offen offset:{1024*(ks%4)}',
                f'buffer_load_dwordx4 {hb(ks,1)}, v{vLO}, {ws}, s{sHB2} offen offset:{1024*(ks%4)}']
        return out
    emit(dma_list())
    PRE = 12
    for ks in range(PRE):
        for l in hbload(ks): k(l)
    for cb in range(8):
        for tt in range(2):
            k(f'buffer_load_dword v{E+2*cb+tt}, v{T}, {ws}, s{sT0} offen offset:{128*tt}')
        k(f's_add_u32 s{sT0}, s{sT0}, 8192')
    emit(dma_list())
    k(f'v_bfe_u32 v{vST}, v{vL}, 4, 1')
    k(f'v_mul_u32_u24 v{vST}, 147456, v{vST}')
    k(f'v_lshrrev_b32 v{T+1}, 5, v{vL}')
    k(f'v_lshl_add_u32 v{vST}, v{T+1}, 8, v{vST}')
    k(f'v_and_b32 v{T+1}, 15, v{vL}')
    k(f'v_lshl_add_u32 v{vST}, v{T+1}, 4, v{vST}')
    k(f'v_mov_b32 v{vRD}, v{vLO}')
    k(f'v_add_u32 v{vRN}, {CH}, v{vLO}')
    k(f's_mov_b32 s{sRD}, {CH}')
    k(f's_waitcnt vmcnt({2*PRE+16+9})')
    k('s_barrier')
    PD = 3
    def rd(ks):
        if ks < 36: return f'ds_read_b128 {vr(WF+4*(ks%4),4)}, v{vRD} offset:{1024*ks}'
        return f'ds_read_b128 {vr(WF+4*(ks%4),4)}, v{vRN} offset:{1024*(ks-36)}'
    for ks in range(PD): k(rd(ks))
    def epi_ops(a):
        ops = []
        for tt in range(2):
            g = a + 16*tt; u = g + 8; e = E + 16*tt
            for hf in range(2):
                r = range(4*hf, 4*hf+4)
                ops += [f'v_mul_f32 v{e+i}, v{C1+tt}, v{g+i}' for i in r]
                ops += [f'v_exp_f32 v{e+i}, v{e+i}' for i in r]
                ops += [f'v_mul_f32 v{e+8+i}, v{g+i}, v{u+i}' for i in r]
                ops += [f'v_fma_f32 v{e+i}, v{e+i}, v{VV+tt}, v{VV+tt}' for i in r]
                ops += [f'v_rcp_f32 v{e+i}, v{e+i}' for i in r]
                ops += [f'v_mul_f32 v{e+8+i}, v{e+8+i}, v{e+i}' for i in r]
            ops += [f'v_cvt_pk_bf16_f32 v{e+i}, v{e+8+2*i}, v{e+9+2*i}' for i in range(4)]
            ops += [f'buffer_store_dwordx4 {vr(e,4)}, v{vST}, {ws}, s{sACT2 if tt else sACT} offen']
        ops += [f's_add_u32 s{sACT}, s{sACT}, 512', f's_add_u32 s{sACT2}, s{sACT2}, 512']
        return ops
    def body(cur, prev, first=False):
        a = ACC + 32*cur
        fill = []
        if first:
            pass
        else:
            fill = dma_list()
            ep = epi_ops(ACC + 32*prev)
            fill += [ep[i:i+2] for i in range(0, len(ep), 2)]
        assert len(fill) <= 70, len(fill)
        slot = 0
        for ks in range(36):
            k(rd(ks + PD))
            if first:
                if ks + PRE < 36:
                    for l in hbload(ks + PRE): k(l)
                if ks in (24, 25): emit(dma_list())
                if ks < PRE: n = 2*(PRE-1-ks) + 16 + 9 + 2*(ks+1)
                elif ks < 24: n = 2*PRE
                else: n = 2*(35-ks) + (9 if ks == 24 else 18)
                k(f's_waitcnt vmcnt({n}) lgkmcnt({PD})')
            else:
                k(f's_waitcnt lgkmcnt({PD})')
            for tt in range(2):
                c = vr(a+16*tt,16) if ks else '0'
                k(f'v_mfma_f32_32x32x16_bf16 {vr(a+16*tt,16)}, {vr(WF+4*(ks%4),4)}, {hb(ks,tt)}, {c}')
                if fill and slot >= 1:
                    for l in fill.pop(0): k(l)
                slot += 1
            if first and ks == PRE + 1:
                for cb in range(1, 8):
                    for tt in range(2): k(f'v_add_f32 v{E+tt}, v{E+tt}, v{E+2*cb+tt}')
                for tt in range(2):
                    k(f'v_mov_b32 v{T}, {f32bits(1e-5):#x}')
                    k(f'v_fmac_f32 v{T}, {f32bits(1/576):#x}, v{E+tt}')
                    k(f'v_mov_b32 v{VV+tt}, v{T}')
                    k(f'v_rsq_f32 v{C1+tt}, v{T}')
                    k(f'v_mul_f32 v{C1+tt}, {f32bits(-math.log2(math.e)):#x}, v{C1+tt}')
            if ks == 36 - PD - 1:
                if first:
                    k('s_barrier')
        if first: k('s_waitcnt vmcnt(9)')
        else: k('s_waitcnt vmcnt(11)')
        k('s_barrier')
        k(f'v_mov_b32 v{vRD}, v{vRN}')
        k(f's_add_u32 s{sRD}, s{sRD}, {CH}')
        k(f's_cmp_ge_u32 s{sRD}, {4*CH}')
        k(f's_cselect_b32 s{sRD}, 0, s{sRD}')
        k(f'v_add_u32 v{vRN}, s{sRD}, v{vLO}')
    body(0, None, first=True)
    k(f's_mov_b32 s{sIT}, 4')
    loop = k.label('loop')
    k(f'{loop}:')
    body(1, 0)
    body(0, 1)
    k(f's_sub_u32 s{sIT}, s{sIT}, 1')
    k(f's_cmp_lg_u32 s{sIT}, 0')
    k(f's_cbranch_scc1 {loop}')
    for l in epi_ops(ACC): k(l)
    k(f'{done}:')
    k('s_endpgm')
    return k.finish(vgpr=156+256, accum=156), (256, 256, K4_LDS)
```

```python
QI  = 0x0
KI  = 0x280000
VT  = 0x500000
OI  = 0x740000
HB  = 0x980000
MUX = 0xBC0000
MU  = 0xBC2000
SS  = 0xBC4000
RM  = 0xBD4000
WOP = 0xC00000
WGU = 0xD00000
WD  = 0x1800000
ACT = 0x1E00000
WS_END = 0x3000000
OOB = 0x7F000000
```

```python
import sys
from k1 import gen_k1
from k2 import gen_k2
from k35 import gen_k3, gen_k5
from k4 import gen_k4
NAME = 'sequential_preLN__softmax_full_mha__swiglu_ffn__prompt'
def build(path, gens):
    ref = open(f'cdna_kernels/{NAME}.s.ref').read().split('\n')
    head = [l for l in ref if l.startswith(';') and '@launch' not in l and 'Override launch' not in l and 'Harness parses' not in l]
    ks = [g() for g in gens]
    out = list(head)
    for (t, d), (grid, block, lds) in ks:
        name = t.split('\n')[0].split()[1]
        out.append(f'; @launch kernel={name} grid=({grid},1,1) block=({block},1,1) lds={lds}')
    out.append('.amdgcn_target "amdgcn-amd-amdhsa--gfx950"')
    out.append('.text')
    seen = set()
    for (t, d), _ in ks:
        if t in seen: continue
        seen.add(t); out.append(t)
    out.append('.section .rodata,"a"')
    seen = set()
    for (t, d), _ in ks:
        if d in seen: continue
        seen.add(d); out.append(d)
    open(path, 'w').write('\n'.join(out))
if __name__ == '__main__':
    build(sys.argv[1] if len(sys.argv) > 1 else f'cdna_kernels/{NAME}.s', [gen_k1, gen_k2, gen_k3, gen_k4, gen_k5])
```

```python
import re

REG_RE = re.compile(r'\b([vas])(\d+)\b|\b([vas])\[(\d+):(\d+)\]')

def regs_of(tok):
    out = set()
    t = tok.strip()
    for m in REG_RE.finditer(t):
        if m.group(1):
            out.add((m.group(1), int(m.group(2))))
        else:
            for i in range(int(m.group(4)), int(m.group(5)) + 1):
                out.add((m.group(3), i))
    if re.search(r'\bvcc\b', t): out |= {('s', 106), ('s', 107)}
    if re.search(r'\bvcc_lo\b', t): out.add(('s', 106))
    if re.search(r'\bvcc_hi\b', t): out.add(('s', 107))
    if re.search(r'\bexec\b', t): out |= {('s', 126), ('s', 127)}
    if re.search(r'\bm0\b', t): out.add(('s', 124))
    return out

TRANS = ('v_exp_f32', 'v_log_f32', 'v_rcp_f32', 'v_rsq_f32', 'v_sqrt_f32', 'v_sin_f32', 'v_cos_f32', 'v_rcp_iflag_f32')
RMW = ('v_fmac_f32', 'v_dot2c_f32_bf16', 'v_pk_fmac_f16')

def mfma_passes(op):
    if '32x32x16' in op or '32x32x8' in op: return 8
    if '16x16x32' in op or '16x16x16' in op: return 4
    if '32x32x4_2b' in op: return 16
    raise ValueError(op)

class Ins:
    __slots__ = ('text', 'op', 'ops', 'dst', 'src', 'kind', 'mods', 'A', 'B', 'C', 'label', 'target', 'data')
    def __init__(self, text):
        self.text = text
        self.label = None; self.target = None
        self.dst = set(); self.src = set(); self.kind = 'other'; self.op = ''
        self.A = self.B = self.C = set(); self.data = set()
        t = text.split(';')[0].strip()
        if not t:
            self.kind = 'none'; return
        if t.endswith(':'):
            self.kind = 'label'; self.label = t[:-1]; return
        if t.startswith('.'):
            self.kind = 'none'; return
        parts = t.split(None, 1)
        op = parts[0]; self.op = op
        rest = parts[1] if len(parts) > 1 else ''
        ops = []; depth = 0; cur = ''
        for ch in rest:
            if ch in '[(': depth += 1
            if ch in '])': depth -= 1
            if ch == ',' and depth == 0:
                ops.append(cur.strip()); cur = ''
            else: cur += ch
        if cur.strip(): ops.append(cur.strip())
        self.ops = ops
        base = re.sub(r'_(e32|e64|dpp|sdwa)$', '', op)
        R = [regs_of(o) for o in ops]
        allsrc = lambda lst: set().union(*lst) if lst else set()
        if op.startswith('v_mfma'):
            self.kind = 'mfma'
            self.dst = R[0]; self.A = R[1]; self.B = R[2]; self.C = R[3]
            self.src = R[1] | R[2] | R[3]
        elif op.startswith('v_'):
            self.kind = 'valu'
            if base.startswith('v_cmp'):
                self.dst = R[0]; self.src = allsrc(R[1:])
            elif base in ('v_readfirstlane_b32', 'v_readlane_b32'):
                self.dst = R[0]; self.src = allsrc(R[1:])
            elif base.startswith('v_permlane') and 'swap' in base:
                self.dst = R[0] | R[1]; self.src = R[0] | R[1]
            elif base in ('v_add_co_u32', 'v_sub_co_u32', 'v_addc_co_u32'):
                self.dst = R[0] | R[1]; self.src = allsrc(R[2:])
            elif base == 'v_nop':
                pass
            else:
                self.dst = R[0]; self.src = allsrc(R[1:])
                if base in RMW: self.src |= R[0]
                if 'dpp' in op or 'quad_perm' in rest or 'row_' in rest: self.src |= R[0]
        elif op.startswith('ds_'):
            self.kind = 'ds'
            if op.startswith('ds_read') or op.startswith('ds_bpermute') or op.startswith('ds_swizzle'):
                self.dst = R[0]; self.src = allsrc(R[1:])
            else:
                self.src = allsrc(R); self.data = allsrc(R[1:])
        elif op.startswith('buffer_') or op.startswith('global_'):
            self.kind = 'vmem'
            if op in ('buffer_inv', 'buffer_wbl2'):
                pass
            elif 'load' in op:
                if re.search(r'\blds\b', rest) or 'load_lds' in op:
                    self.src = allsrc(R) | {('s', 124)}; self.kind = 'vmem_lds'
                else:
                    self.dst = R[0]; self.src = allsrc(R[1:])
            elif 'store' in op:
                self.src = allsrc(R)
                self.data = R[0] if op.startswith('buffer_') else R[1]
            elif 'atomic' in op:
                self.src = allsrc(R)
                if re.search(r'\bsc0\b', rest): self.dst = R[0]
        elif op.startswith('s_load') or op.startswith('s_memtime') or op.startswith('s_memrealtime') or op.startswith('s_buffer_load'):
            self.kind = 'smem'; self.dst = R[0]; self.src = allsrc(R[1:])
        elif op.startswith('s_'):
            self.kind = 'salu'
            if op in ('s_branch',) or op.startswith('s_cbranch'):
                self.kind = 'branch'; self.target = ops[0]
            elif op in ('s_waitcnt', 's_nop', 's_barrier', 's_endpgm', 's_setprio', 's_sleep'):
                self.kind = op
            elif op.startswith('s_cmp') or op.startswith('s_bitcmp'):
                self.src = allsrc(R)
            else:
                self.dst = R[0] if R else set(); self.src = allsrc(R[1:])
                if 'saveexec' in op: self.dst |= {('s', 126), ('s', 127)}
        else:
            raise ValueError('unknown instr: ' + text)

    def states(self):
        if self.kind == 's_nop': return int(self.ops[0], 0) + 1
        if self.kind in ('none', 'label'): return 0
        return 1

def is_vreg(r): return r[0] in 'va'

def need(prod, cons):
    n = 0
    base = re.sub(r'_(e32|e64|dpp|sdwa)$', '', prod.op)
    cbase = re.sub(r'_(e32|e64|dpp|sdwa)$', '', cons.op)
    if prod.kind == 'valu':
        pv = {r for r in prod.dst if is_vreg(r)}
        ps = {r for r in prod.dst if r[0] == 's'}
        if pv:
            if cons.kind == 'mfma' and pv & cons.src: n = max(n, 2)
            if cons.kind == 'valu':
                isdpp = 'dpp' in cons.op or 'quad_perm' in cons.text or 'row_' in cons.text
                if isdpp and pv & cons.src: n = max(n, 2)
                if cbase in ('v_readfirstlane_b32', 'v_readlane_b32') and pv & cons.src: n = max(n, 1)
                if cbase.startswith('v_permlane') and pv & cons.src: n = max(n, 2)
            if base in TRANS and pv & cons.src and cbase not in TRANS: n = max(n, 1)
            if base.startswith('v_dot') and (pv & (cons.src | cons.dst)):
                if cbase == base:
                    ab = set().union(*[regs_of(o) for o in cons.ops[1:3]])
                    if pv & ab: n = max(n, 3)
                else: n = max(n, 3)
        if ps:
            if cons.kind in ('vmem', 'vmem_lds') and ps & cons.src: n = max(n, 5)
            if cons.kind == 'valu' and ps & cons.src: n = max(n, 4 if 'lane' in cbase else 2)
            if cons.kind in ('salu', 'branch', 'smem') and ps & cons.src: n = max(n, 1)
            if cons.kind == 'branch' and 'vcc' in cons.op and ps & {('s', 106), ('s', 107)}: n = max(n, 5)
            if ps & {('s', 126), ('s', 127)}: n = max(n, 5)
    if prod.kind == 'salu' and ('s', 124) in prod.dst and cons.kind == 'vmem_lds': n = max(n, 1)
    if prod.kind == 'mfma':
        p = mfma_passes(prod.op)
        if cons.kind == 'mfma':
            if prod.dst & (cons.A | cons.B): n = max(n, p + 4)
            if prod.dst & cons.C:
                if prod.dst == cons.C and mfma_passes(cons.op) == p: n = max(n, 0)
                else: n = max(n, p + 2)
            elif prod.dst & cons.dst:
                n = max(n, p + 2)
        elif cons.kind in ('valu', 'ds', 'vmem', 'vmem_lds'):
            if prod.dst & (cons.src | cons.dst): n = max(n, p + 4)
            if cons.kind == 'valu' and prod.C & cons.dst: n = max(n, p - 1)
    if prod.kind == 'vmem' and prod.data and len(prod.data) >= 3:
        if prod.data & cons.dst: n = max(n, 2 if cons.kind in ('valu', 'mfma') else 1)
    return n

MAXD = 22

def insert_nops(lines):
    ins = [Ins(l) for l in lines]
    changed = True
    rounds = 0
    while changed:
        changed = False; rounds += 1
        assert rounds < 50
        labels = {x.label: i for i, x in enumerate(ins) if x.kind == 'label'}
        inserts = {}
        for i, p in enumerate(ins):
            if p.kind not in ('valu', 'salu', 'mfma', 'vmem'): continue
            stack = [(i + 1, 0)]
            seen = set()
            while stack:
                j, d = stack.pop()
                while j < len(ins) and d < MAXD:
                    if (j, d) in seen: break
                    seen.add((j, d))
                    c = ins[j]
                    if c.kind not in ('none', 'label'):
                        nn = need(p, c)
                        if nn > d:
                            inserts[j] = max(inserts.get(j, 0), nn - d)
                        if c.kind == 's_endpgm': break
                        if c.kind == 'branch':
                            stack.append((labels[c.target], d + 1))
                            if c.op == 's_branch': break
                    d += c.states(); j += 1
        if inserts:
            changed = True
            j0 = min(inserts)
            out = []
            last = -100
            for j, x in enumerate(ins):
                if j in inserts and j - last > MAXD:
                    k = inserts[j]
                    while k > 0:
                        m = min(k, 16)
                        out.append(Ins(f'    s_nop {m-1}')); k -= m
                    last = j
                out.append(x)
            ins = out
    return [x.text for x in ins]

def verify_waits(lines, name=''):
    ins = [Ins(l) for l in lines]
    labels = {x.label: i for i, x in enumerate(ins) if x.kind == 'label'}
    errs = set()
    def run(start, vm, lg, taken, depth):
        j = start
        while j < len(ins):
            c = ins[j]
            if c.kind in ('none', 'label'): j += 1; continue
            if c.kind == 's_endpgm': return
            if c.kind == 's_waitcnt':
                m = re.search(r'vmcnt\((\d+)\)', c.text)
                if m:
                    n = int(m.group(1)); vm = vm[len(vm) - n:] if n < len(vm) else vm
                    if n == 0: vm = []
                m = re.search(r'lgkmcnt\((\d+)\)', c.text)
                if m:
                    n = int(m.group(1))
                    if n == 0: lg = []
                    elif not any(k == 'smem' for k, _ in lg):
                        lg = lg[len(lg) - n:] if n < len(lg) else lg
                j += 1; continue
            touched = c.src | c.dst
            for q in (vm, lg):
                for k, d in q:
                    if d & c.src or (d & c.dst and not (c.kind in ('vmem', 'ds') and k == c.kind)):
                        errs.add(f'{name}: line {j}: "{c.text.strip()}" touches in-flight {sorted(d & touched)[:4]}')
            if c.kind in ('vmem', 'vmem_lds'):
                vm = vm + [('vmem', set(c.dst))]
                if len(vm) > 63: errs.add(f'{name}: line {j}: vmcnt overflow >63')
            elif c.kind == 'ds': lg = lg + [('ds', set(c.dst))]
            elif c.kind == 'smem': lg = lg + [('smem', set(c.dst))]
            if c.kind == 'branch':
                t = labels[c.target]
                if t <= j:
                    cnt = taken.get(j, 0)
                    if cnt < 2:
                        taken = dict(taken); taken[j] = cnt + 1
                        j = t; continue
                    if c.op == 's_branch': return
                else:
                    if c.op == 's_branch': j = t; continue
                    if depth < 6 and (j, 'f') not in taken:
                        t2 = dict(taken); t2[(j, 'f')] = 1
                        run(t, list(vm), list(lg), t2, depth + 1)
            j += 1
    run(0, [], [], {}, 0)
    return sorted(errs)

class K:
    def __init__(self, name):
        self.name = name; self.L = []
        self.nlab = 0
    def __call__(self, s):
        for l in s.split('\n'):
            l = l.strip()
            if l: self.L.append(l if l.endswith(':') else '    ' + l)
    prof = False
    kidx = 0
    def stamp(self, i, real=False):
        if not K.prof: return
        self(f's_memrealtime s[{70+2*i}:{71+2*i}]' if real else f's_memtime s[{70+2*i}:{71+2*i}]')
    def stamp_flush(self, wsrd, swave, n=14):
        if not K.prof: return
        from layout import PROF
        self('s_waitcnt lgkmcnt(0)')
        self(f's_lshl_b32 s68, s2, 4')
        self(f's_add_u32 s68, s68, s{swave}')
        self(f's_lshl_b32 s68, s68, 6')
        self(f's_add_u32 s68, s68, {PROF + self.kidx*256*16*64:#x}')
        self('s_mov_b64 exec, 1')
        self('v_mov_b32 v0, 0')
        for i in range(n):
            self(f'v_mov_b32 v1, s{70+2*i}')
            self(f'buffer_store_dword v1, v0, {wsrd}, s68 offen offset:{4*i}')
    def label(self, base='L'):
        self.nlab += 1
        return f'{self.name}_{base}{self.nlab}'
    def finish(self, vgpr, accum, sgpr=102):
        lines = insert_nops(self.L)
        errs = verify_waits([l for l in lines if 's_memtime' not in l and 's_memrealtime' not in l], self.name)
        for e in errs[:10]: print('WAITCNT WARNING', e)
        mv = ma = ms = -1
        for l in lines:
            x = Ins(l)
            for f, i in x.src | x.dst:
                if f == 'v': mv = max(mv, i)
                if f == 'a': ma = max(ma, i)
                if f == 's' and i < 102: ms = max(ms, i)
        assert mv < accum, (self.name, mv, accum)
        assert accum + ma + 1 <= vgpr or ma < 0, (self.name, ma)
        assert mv < vgpr
        nn = sum(1 for l in lines if 's_nop' in l)
        print(f'{self.name}: {len(lines)} lines, maxv {mv} maxa {ma} maxs {ms}, s_nops {nn}')
        text = f'.globl {self.name}\n.p2align 8\n.type {self.name},@function\n{self.name}:\n' + '\n'.join(lines) + '\n'
        desc = f'''.p2align 6
.amdhsa_kernel {self.name}
  .amdhsa_next_free_vgpr {vgpr}
  .amdhsa_next_free_sgpr {sgpr}
  .amdhsa_accum_offset {accum}
  .amdhsa_group_segment_fixed_size 0
  .amdhsa_kernarg_size 80
  .amdhsa_user_sgpr_count 2
  .amdhsa_user_sgpr_kernarg_segment_ptr 1
  .amdhsa_system_sgpr_workgroup_id_x 1
.end_amdhsa_kernel
'''
        return text, desc

def vr(a, n=1, f='v'):
    return f'{f}{a}' if n == 1 else f'{f}[{a}:{a+n-1}]'
def sr(a, n=1): return vr(a, n, 's')
def ar(a, n=1): return vr(a, n, 'a')
import struct
def f32bits(x): return struct.unpack('<I', struct.pack('<f', x))[0]
```

```python
from asmlib import *
from layout import *
import math

def srd(k, d, ptr, size):
    k(f's_mov_b32 s{d}, s{ptr}')
    k(f's_and_b32 s{d+1}, s{ptr+1}, 0xffff')
    k(f's_mov_b32 s{d+2}, {size:#x}')
    k(f's_mov_b32 s{d+3}, 0x00020000')

SLOT = 32768
ST = 4 * SLOT
TE, CE, RS = ST, ST + 2048, ST + 4096
K1_LDS = ST + 4096 + 512

def gen_k1():
    k = K('k1_qkv_kernel')
    X, W, WS, WO = 12, 16, 20, 24
    sTB, sCG, sWV, sPR, sONE, sT0, sT1, sT2, sXO, sWO, sM0, sCNT, sSC, sREG, sRD, sWM, sWN, sTA, sCA, sLEFT = range(28, 48)
    vL = 1
    VX, VW = 2, 6
    XA, XB, WA, WB = 10, 14, 18, 19
    LXA, LW = 20, 24
    SX, SXX, CS = 26, 28, 30
    T = 32
    WF = 48
    XF = 64
    ACC = 80
    E = 144
    done = k.label('done'); side = k.label('side')
    k(f's_cmp_ge_u32 s2, 256')
    k(f's_cbranch_scc1 {done}')
    k.kidx = 0; k.stamp(0); k.stamp(12, True)
    k('s_load_dwordx4 s[4:7], s[0:1], 0')
    k('s_load_dwordx2 s[8:9], s[0:1], 16')
    k('s_load_dwordx2 s[10:11], s[0:1], 72')
    k(f'v_lshrrev_b32 v{T}, 6, v0')
    k(f'v_and_b32 v{vL}, 63, v0')
    k(f'v_readfirstlane_b32 s{sWV}, v{T}')
    k('s_getpc_b64 s[48:49]')
    k('k1_pc:')
    k(f'v_lshlrev_b32 v{T+1}, 4, v0')
    k(f'global_load_dwordx4 {vr(E,4)}, v{T+1}, s[48:49]')
    k(f'v_add_u32 v{T+1}, 4096, v{T+1}')
    k(f'global_load_dwordx4 {vr(E+4,4)}, v{T+1}, s[48:49]')
    k(f's_bfe_u32 s{sTB}, s2, 0x20001')
    k(f's_lshl_b32 s{sTB}, s{sTB}, 2')
    k(f's_bfe_u32 s{sT0}, s2, 0x20003')
    k(f's_add_u32 s{sTB}, s{sTB}, s{sT0}')
    k(f's_lshr_b32 s{sT1}, s2, 5')
    k(f's_and_b32 s{sT0}, s2, 1')
    k(f's_mul_i32 s{sCG}, s{sT0}, 7')
    k(f's_add_u32 s{sCG}, s{sCG}, s{sT1}')
    k(f's_mov_b32 s{sONE}, 0x3f803f80')
    k(f's_cmp_eq_u32 s{sT1}, 7')
    k(f's_cbranch_scc1 {side}')
    k(f's_lshr_b32 s{sWM}, s{sWV}, 1')
    k(f's_and_b32 s{sWN}, s{sWV}, 1')
    k(f's_lshl_b32 s{sPR}, s{sCG}, 1')
    k(f's_add_u32 s{sPR}, s{sPR}, s{sWN}')
    k(f'v_lshrrev_b32 v{T}, 3, v{vL}')
    k(f'v_mul_u32_u24 v{T}, 1152, v{T}')
    k(f'v_and_b32 v{T+1}, 7, v{vL}')
    k(f'v_lshrrev_b32 v{T+2}, 4, v{vL}')
    k(f'v_xor_b32 v{T+1}, v{T+1}, v{T+2}')
    k(f'v_lshl_add_u32 v{VX}, v{T+1}, 4, v{T}')
    k(f'v_xor_b32 v{VX+1}, 64, v{VX}')
    k(f'v_add_u32 v{VX+1}, {8*1152-1024}, v{VX+1}')
    k(f'v_add_u32 v{VX+2}, {2*(8*1152-1024)}, v{VX}')
    k(f'v_add_u32 v{VX+3}, {2*(8*1152-1024)}, v{VX+1}')
    k(f'v_bfe_u32 v{T+3}, v{vL}, 2, 2')
    k(f'v_and_b32 v{T+4}, 3, v{vL}')
    k(f'v_mul_u32_u24 v{VW}, 3456, v{T+3}')
    k(f'v_lshl_add_u32 v{VW}, v{T+2}, 6, v{VW}')
    k(f'v_lshl_add_u32 v{VW}, v{T+4}, 4, v{VW}')
    for i in range(1, 4): k(f'v_add_u32 v{VW+i}, {i*(4*3456-1024)}, v{VW}')
    k(f's_lshl_b32 s{sT0}, s{sTB}, 2')
    k(f's_add_u32 s{sT0}, s{sT0}, s{sWV}')
    k(f's_mul_i32 s{sXO}, s{sT0}, {32*1152}')
    k(f's_mul_i32 s{sWO}, s{sWV}, {16*3456}')
    k(f's_lshl_b32 s{sT0}, s{sCG}, 8')
    k(f's_add_u32 s{sWO}, s{sWO}, s{sT0}')
    k(f's_lshl_b32 s{sM0}, s{sWV}, 12')
    k(f's_mov_b32 s{sLEFT}, 9')
    k('s_waitcnt lgkmcnt(0)')
    k.stamp(7)
    srd(k, X, 4, 2048 * 1152)
    srd(k, W, 6, 576 * 3456)
    def dma(j):
        out = []
        if j == 0: out.append(f's_mov_b32 m0, s{sM0}')
        if j == 4: out.append(f's_add_u32 m0, s{sM0}, 16384')
        if j < 4: out.append(f'buffer_load_dwordx4 v{VX+j}, {sr(X,4)}, s{sXO} offen offset:{1024*j} lds')
        else: out.append(f'buffer_load_dwordx4 v{VW+j-4}, {sr(W,4)}, s{sWO} offen offset:{1024*(j-4)} lds')
        if j == 7:
            out += [f's_add_u32 s{sXO}, s{sXO}, 128', f's_add_u32 s{sWO}, s{sWO}, {64*3456}',
                    f's_add_u32 s{sM0}, s{sM0}, {SLOT}', f's_and_b32 s{sM0}, s{sM0}, {4*SLOT-1:#x}',
                    f's_sub_u32 s{sLEFT}, s{sLEFT}, 1', f's_cmp_eq_u32 s{sLEFT}, 0',
                    f's_cselect_b32 s{sXO}, {OOB:#x}, s{sXO}']
        return out
    pl = k.label('pl')
    k(f's_mov_b32 s{sCNT}, 3')
    k(f'{pl}:')
    for j in range(8):
        for l in dma(j): k(l)
    k(f's_sub_u32 s{sCNT}, s{sCNT}, 1')
    k(f's_cmp_lg_u32 s{sCNT}, 0')
    k(f's_cbranch_scc1 {pl}')
    for j in range(2):
        for l in dma(j): k(l)
    srd(k, WS, 10, WS_END)
    k(f's_mul_i32 s{sREG}, s{sPR}, 57')
    k(f's_lshr_b32 s{sREG}, s{sREG}, 9')
    k(f's_lshl_b32 s{sTA}, s{sWM}, 1')
    k(f's_add_u32 s{sTA}, s{sTA}, s{sWN}')
    k(f's_lshl_b32 s{sCA}, s{sWN}, 1')
    k(f's_add_u32 s{sCA}, s{sCA}, s{sWM}')
    k(f'v_lshrrev_b32 v{T+5}, 5, v{vL}')
    k(f'v_and_b32 v{T+6}, 31, v{vL}')
    k(f'v_bfe_u32 v{T+7}, v{vL}, 1, 3')
    k(f'v_xor_b32 v{T+7}, v{T+7}, v{T+5}')
    k(f'v_lshlrev_b32 v{T+7}, 4, v{T+7}')
    k(f'v_lshl_add_u32 v{T+7}, v{T+6}, 7, v{T+7}')
    k(f's_lshl_b32 s{sT0}, s{sTA}, 12')
    k(f'v_add_u32 v{LXA}, s{sT0}, v{T+7}')
    for ks in range(1, 4): k(f'v_xor_b32 v{LXA+ks}, {32*ks}, v{LXA}')
    k(f'v_lshlrev_b32 v{T+8}, 3, v{T+4}')
    k(f'v_and_b32 v{T+9}, 1, v{T+4}')
    k(f'v_lshlrev_b32 v{T+9}, 4, v{T+9}')
    k(f'v_lshrrev_b32 v{T+10}, 1, v{T+4}')
    k(f'v_lshl_add_u32 v{T+9}, v{T+10}, 3, v{T+9}')
    k(f's_cmp_ge_u32 s{sREG}, 2')
    k(f's_cselect_b64 vcc, -1, 0')
    k(f'v_cndmask_b32 v{LW}, v{T+9}, v{T+8}, vcc')
    k(f'v_lshl_add_u32 v{LW}, v{T+3}, 6, v{LW}')
    k(f'v_bfe_u32 v{T+8}, v{vL}, 4, 1')
    k(f'v_lshl_add_u32 v{LW}, v{T+8}, 5, v{LW}')
    k(f'v_lshl_add_u32 v{LW}, v{T+5}, 11, v{LW}')
    k(f's_lshl_b32 s{sT0}, s{sCA}, 8')
    k(f's_add_u32 s{sT0}, s{sT0}, 16384')
    k(f'v_add_u32 v{LW}, s{sT0}, v{LW}')
    for i in range(6): k(f'v_mov_b32 v{SX+i}, 0')
    k(f's_mov_b32 s{sRD}, 0')
    def setaddr():
        out = [f'v_add_u32 v{XA+ks}, s{sRD}, v{LXA+ks}' for ks in range(4)]
        out += [f'v_xor_b32 v{XB+ks}, 4096, v{XA+ks}' for ks in range(4)]
        out += [f'v_add_u32 v{WA}, s{sRD}, v{LW}', f'v_xor_b32 v{WB}, 256, v{WA}',
                f's_add_u32 s{sRD}, s{sRD}, {SLOT}', f's_and_b32 s{sRD}, s{sRD}, {4*SLOT-1:#x}']
        return out
    def reads(ks, buf):
        out = []
        out.append(f'ds_read_b128 {vr(XF+8*buf,4)}, v{XA+ks}')
        for rd in range(2): out.append(f'ds_read_b64_tr_b16 {vr(WF+8*buf+2*rd,2)}, v{WA} offset:{4096*ks+1024*rd}')
        out.append(f'ds_read_b128 {vr(XF+8*buf+4,4)}, v{XB+ks}')
        for rd in range(2): out.append(f'ds_read_b64_tr_b16 {vr(WF+8*buf+4+2*rd,2)}, v{WB} offset:{4096*ks+1024*rd}')
        return out
    for l in setaddr(): k(l)
    for i in range(64): k(f'v_mov_b32 v{ACC+i}, 0')
    k('s_waitcnt vmcnt(18)')
    k.stamp(1)
    k('s_barrier')
    for l in reads(0, 0): k(l)
    k(f'v_add_u32 v{XA}, s{sRD}, v{LXA}')
    k(f'v_xor_b32 v{XB}, 4096, v{XA}')
    k(f's_mov_b32 s{sCNT}, 9')
    vpath = k.label('vpath'); epi = k.label('epi')
    def gemm(isV):
        loop = k.label('loop')
        k(f'{loop}:')
        for ks in range(4):
            buf = ks & 1
            if ks == 3:
                k('s_waitcnt vmcnt(16) lgkmcnt(0)')
                k('s_barrier')
            else:
                k('s_waitcnt lgkmcnt(0)')
            nk = (ks + 1) & 3
            rds = reads(nk, buf ^ 1)
            upd = [f'v_add_u32 v{XA+nk}, s{sRD}, v{LXA+nk}', f'v_xor_b32 v{XB+nk}, 4096, v{XA+nk}']
            if ks == 2: upd += [f'v_add_u32 v{WA}, s{sRD}, v{LW}', f'v_xor_b32 v{WB}, 256, v{WA}',
                                f's_add_u32 s{sRD}, s{sRD}, {SLOT}', f's_and_b32 s{sRD}, s{sRD}, {4*SLOT-1:#x}']
            dm1 = dma((2*ks + 2) & 7); dm2 = dma((2*ks + 3) & 7)
            dots = []
            for r in range(4):
                x = XF + 8*buf + r; w = WF + 8*buf + r
                dots += [f'v_dot2c_f32_bf16 v{SX+(r&1)}, s{sONE}, v{x}', f'v_dot2c_f32_bf16 v{SXX+(r&1)}, v{x}, v{x}',
                         f'v_dot2c_f32_bf16 v{CS+(r&1)}, s{sONE}, v{w}']
            import os
            X_ = os.environ.get('K1X', '')
            if 'nodots' in X_: dots = []
            if 'nodma' in X_: dm1 = [l for l in dm1 if not l.startswith('buffer')]; dm2 = [l for l in dm2 if not l.startswith('buffer')]
            if 'nords' in X_: rds = []
            fills = [rds[:3], dm1, rds[3:] + upd, dm2 + dots]
            j = 0
            for ct in range(2):
                for tt in range(2):
                    a = ACC + 16*(2*ct+tt); wf = vr(WF+8*buf+4*ct,4); xf = vr(XF+8*buf+4*tt,4)
                    if isV: k(f'v_mfma_f32_32x32x16_bf16 {vr(a,16)}, {xf}, {wf}, {vr(a,16)}')
                    else:   k(f'v_mfma_f32_32x32x16_bf16 {vr(a,16)}, {wf}, {xf}, {vr(a,16)}')
                    for l in fills[j]: k(l)
                    j += 1
        k(f's_sub_u32 s{sCNT}, s{sCNT}, 1')
        k(f's_cmp_lg_u32 s{sCNT}, 0')
        k(f's_cbranch_scc1 {loop}')
    k(f's_cmp_ge_u32 s{sREG}, 2')
    k(f's_cbranch_scc1 {vpath}')
    gemm(False)
    k(f's_branch {epi}')
    k(f'{vpath}:')
    gemm(True)
    k(f'{epi}:')
    k.stamp(2)
    for a in (SX, SXX, CS): k(f'v_add_f32 v{a}, v{a}, v{a+1}')
    for a in (SX, SXX, CS): k(f'v_mov_b32 v{a+1}, v{a}')
    for a in (SX, SXX, CS): k(f'v_permlane32_swap_b32 v{a}, v{a+1}')
    for a in (SX, SXX, CS): k(f'v_add_f32 v{a}, v{a}, v{a+1}')
    k(f'v_mul_f32 v{SX}, {f32bits(-1/576):#x}, v{SX}')
    k(f'v_mul_f32 v{SXX}, {f32bits(1/576):#x}, v{SXX}')
    k(f'v_fma_f32 v{SXX}, -v{SX}, v{SX}, v{SXX}')
    k(f'v_max_f32 v{SXX}, 0, v{SXX}')
    k(f'v_add_f32 v{SXX}, {f32bits(1e-5):#x}, v{SXX}')
    k(f'v_rsq_f32 v{SXX}, v{SXX}')
    TX, CX = XF, WF
    k('s_waitcnt lgkmcnt(0)')
    k(f'v_cvt_pk_bf16_f32 v{TX}, v{SX}, v{SX}')
    k(f'v_lshlrev_b32 v{T}, 16, v{TX}')
    k(f'v_sub_f32 v{T}, v{SX}, v{T}')
    k(f'v_cvt_pk_bf16_f32 v{TX+1}, v{T}, 0')
    k(f'v_cvt_pk_bf16_f32 v{CX+1}, v{CS}, 0')
    k(f'v_lshlrev_b32 v{T+1}, 16, v{CX+1}')
    k(f'v_sub_f32 v{T+1}, v{CS}, v{T+1}')
    k(f'v_cvt_pk_bf16_f32 v{CX}, v{CS}, v{T+1}')
    k(f'v_cmp_gt_u32 vcc, 32, v{vL}')
    k(f'v_cndmask_b32 v{TX}, 0, v{TX}, vcc')
    k(f'v_cndmask_b32 v{TX+1}, 0, v{TX+1}, vcc')
    k(f's_lshl_b32 s{sT0}, s{sTA}, 9')
    k(f's_add_u32 s{sT0}, s{sT0}, {TE}')
    k(f'v_lshl_add_u32 v{T+2}, v{vL}, 3, s{sT0}')
    k(f's_lshl_b32 s{sT0}, s{sCA}, 9')
    k(f's_add_u32 s{sT0}, s{sT0}, {CE}')
    k(f'v_lshl_add_u32 v{T+3}, v{vL}, 3, s{sT0}')
    k(f's_lshl_b32 s{sT0}, s{sTA}, 7')
    k(f's_add_u32 s{sT0}, s{sT0}, {RS}')
    k(f'v_lshl_add_u32 v{T+4}, v{T+6}, 2, s{sT0}')
    k(f'ds_write_b64 v{T+2}, {vr(TX,2)}')
    k(f'ds_write_b64 v{T+3}, {vr(CX,2)}')
    k(f'ds_write_b32 v{T+4}, v{SXX}')
    k(f'v_xor_b32 v{T+2}, 512, v{T+2}')
    k(f'v_xor_b32 v{T+3}, 512, v{T+3}')
    k(f'v_xor_b32 v{T+4}, 128, v{T+4}')
    k(f's_lshl_b32 s{sT2}, s{sTB}, 2')
    k(f's_add_u32 s{sTA}, s{sTA}, s{sT2}')
    nomean = k.label('nomean')
    k(f's_cmp_lg_u32 s{sCG}, 0')
    k(f's_cbranch_scc1 {nomean}')
    k(f's_lshl_b32 s{sT1}, s{sTA}, 7')
    k(f's_add_u32 s{sT1}, s{sT1}, {MUX:#x}')
    k(f'v_sub_f32 v{T}, 0, v{SX}')
    k(f'v_lshlrev_b32 v{T+1}, 2, v{T+6}')
    k(f'buffer_store_dword v{T}, v{T+1}, {sr(WS,4)}, s{sT1} offen')
    k(f'{nomean}:')
    k('s_waitcnt lgkmcnt(0)')
    k('s_barrier')
    k(f's_cmp_eq_u32 s{sREG}, 3')
    k(f's_cbranch_scc1 {done}')
    k(f'ds_read_b64 {vr(TX+2,2)}, v{T+2}')
    k(f'ds_read_b64 {vr(CX+2,2)}, v{T+3}')
    k(f's_mul_i32 s{sT0}, s{sREG}, 9')
    k(f's_sub_u32 s{sT0}, s{sPR}, s{sT0}')
    k(f's_lshl_b32 s{sT0}, s{sT0}, 1')
    k(f's_add_u32 s{sCA}, s{sT0}, s{sWM}')
    vepi = k.label('vepi')
    k(f's_cmp_eq_u32 s{sREG}, 2')
    k(f's_cbranch_scc1 {vepi}')
    k(f'ds_read_b32 v{SXX+1}, v{T+4}')
    cq = math.log2(math.e) / math.sqrt(18.0)
    k(f's_cmp_eq_u32 s{sREG}, 0')
    k(f's_cselect_b32 s{sSC}, {f32bits(cq):#x}, 1.0')
    k(f's_cselect_b32 s{sT1}, 0, {KI:#x}')
    k(f'v_lshlrev_b32 v{T}, 4, v{T+6}')
    k(f'v_lshl_add_u32 v{T}, v{T+5}, 15, v{T}')
    k(f'v_add_u32 v{T+1}, 65536, v{T}')
    k('s_waitcnt lgkmcnt(0)')
    for ct in range(2):
        for tt in range(2):
            a = ACC + 16*(2*ct+tt)
            k(f'v_mfma_f32_32x32x8_bf16 {vr(a,16)}, {vr(CX+2*ct,2)}, {vr(TX+2*tt,2)}, {vr(a,16)}')
    k(f'v_mul_f32 v{SXX}, s{sSC}, v{SXX}')
    k(f'v_mul_f32 v{SXX+1}, s{sSC}, v{SXX+1}')
    for ct in range(2):
        for tt in range(2):
            a = ACC + 16*(2*ct+tt)
            k(f's_xor_b32 s{sT0}, s{sCA}, {ct}')
            k(f's_lshl_b32 s{sT0}, s{sT0}, 17')
            k(f's_xor_b32 s{sT2}, s{sTA}, {tt}')
            k(f's_lshl_b32 s{sT2}, s{sT2}, 9')
            k(f's_add_u32 s{sT0}, s{sT0}, s{sT2}')
            k(f's_add_u32 s{sT0}, s{sT0}, s{sT1}')
            for u in range(2):
                for i in range(4):
                    r = a + 8*u + 2*i
                    k(f'v_pk_mul_f32 {vr(r,2)}, {vr(r,2)}, {vr(SXX,2)} op_sel:[0,{tt}] op_sel_hi:[1,{tt}]')
                for i in range(4):
                    k(f'v_cvt_pk_bf16_f32 v{a+8*u+i}, v{a+8*u+2*i}, v{a+8*u+2*i+1}')
                k(f'buffer_store_dwordx4 {vr(a+8*u,4)}, v{T+u}, {sr(WS,4)}, s{sT0} offen sc1')
    k('s_waitcnt vmcnt(0)') if K.prof else None
    k.stamp(3); k.stamp(13, True); k.stamp_flush(sr(WS,4), sWV)
    k('s_endpgm')
    k(f'{vepi}:')
    k(f'v_and_b32 v{T+4}, {0xffffff80:#x}, v{T+4}')
    k(f'v_lshl_add_u32 v{T+4}, v{T+5}, 4, v{T+4}')
    k(f'v_xor_b32 v{T+7}, 128, v{T+4}')
    for g in range(4):
        k(f'ds_read_b128 {vr(E+4*g,4)}, v{T+7} offset:{32*g}')
        k(f'ds_read_b128 {vr(E+16+4*g,4)}, v{T+4} offset:{32*g}')
    k(f'v_mul_u32_u24 v{T}, {VP}, v{T+5}')
    k(f'v_lshl_add_u32 v{T}, v{T+6}, 4, v{T}')
    k(f'v_add_u32 v{T+1}, {2*VP}, v{T}')
    k('s_waitcnt lgkmcnt(8)')
    for ct in range(2):
        for tt in range(2):
            a = ACC + 16*(2*ct+tt)
            k(f'v_mfma_f32_32x32x8_bf16 {vr(a,16)}, {vr(TX+2*tt,2)}, {vr(CX+2*ct,2)}, {vr(a,16)}')
    k('s_waitcnt lgkmcnt(0)')
    for ct in range(2):
        for tt in range(2):
            a = ACC + 16*(2*ct+tt)
            k(f's_xor_b32 s{sT0}, s{sCA}, {ct}')
            k(f's_lshl_b32 s{sT0}, s{sT0}, 9')
            k(f's_xor_b32 s{sT2}, s{sTA}, {tt}')
            k(f's_mul_i32 s{sT2}, s{sT2}, {4*VP}')
            k(f's_add_u32 s{sT0}, s{sT0}, s{sT2}')
            k(f's_add_u32 s{sT0}, s{sT0}, {VT:#x}')
            for u in range(2):
                for i in range(4):
                    r = a + 8*u + 2*i
                    k(f'v_pk_mul_f32 {vr(r,2)}, {vr(r,2)}, {vr(E+16*tt+8*u+2*i,2)}')
                for i in range(4):
                    k(f'v_cvt_pk_bf16_f32 v{a+8*u+i}, v{a+8*u+2*i}, v{a+8*u+2*i+1}')
                k(f'buffer_store_dwordx4 {vr(a+8*u,4)}, v{T+u}, {sr(WS,4)}, s{sT0} offen sc1')
    k('s_waitcnt vmcnt(0)') if K.prof else None
    k.stamp(3); k.stamp(13, True); k.stamp_flush(sr(WS,4), sWV)
    k('s_endpgm')
    k(f'{side}:')
    k(f's_and_b32 s{sT0}, s2, 31')
    k(f's_lshl_b32 s{sT0}, s{sT0}, 2')
    k(f's_add_u32 s{sT0}, s{sT0}, s{sWV}')
    k(f's_bfe_u32 s{sT1}, s2, 0x20003')
    k(f's_lshl_b32 s{sT1}, s{sT1}, 12')
    k(f's_add_u32 s{sT1}, s{sT1}, k2_attn_kernel-k1_pc')
    k(f'v_lshl_add_u32 v12, v0, 4, s{sT1}')
    pfl = k.label('pfl')
    k(f'{pfl}:')
    k(f'v_min_u32 v13, code_end-k1_pc-16, v12')
    k(f'global_load_dwordx4 v[16:19], v13, s[48:49]')
    k(f'v_add_u32 v12, 16384, v12')
    k(f's_add_u32 s{sT1}, s{sT1}, 16384')
    k(f's_cmp_lt_u32 s{sT1}, code_end-k1_pc')
    k(f's_cbranch_scc1 {pfl}')
    k('s_waitcnt lgkmcnt(0)')
    srd(k, WS, 10, WS_END)
    srd(k, WO, 8, 576 * 1152)
    s2 = k.label('side2')
    k(f's_cmp_ge_u32 s{sT0}, 72')
    k(f's_cbranch_scc1 {s2}')
    XD = 48
    k(f'v_lshrrev_b32 v2, 3, v{vL}')
    k(f'v_and_b32 v3, 7, v{vL}')
    ext = k.label('ext'); rowd = k.label('rowd')
    k(f's_cmp_ge_u32 s{sT0}, 64')
    k(f's_cbranch_scc1 {ext}')
    k(f's_lshr_b32 s{sT1}, s{sT0}, 1')
    k(f's_mul_i32 s{sT1}, s{sT1}, 18')
    k(f's_and_b32 s{sT2}, s{sT0}, 1')
    k(f's_lshl_b32 s{sT2}, s{sT2}, 2')
    k(f's_add_u32 s{sT1}, s{sT1}, s{sT2}')
    k(f'v_lshrrev_b32 v4, 2, v2')
    k(f'v_lshlrev_b32 v4, 3, v4')
    k(f'v_and_b32 v5, 3, v2')
    k(f'v_add3_u32 v4, v4, v5, s{sT1}')
    k(f's_branch {rowd}')
    k(f'{ext}:')
    k(f's_sub_u32 s{sT1}, s{sT0}, 64')
    k(f's_mul_i32 s{sT1}, s{sT1}, 72')
    k(f's_add_u32 s{sT1}, s{sT1}, 16')
    k(f'v_lshrrev_b32 v4, 1, v2')
    k(f'v_mul_u32_u24 v4, 18, v4')
    k(f'v_and_b32 v5, 1, v2')
    k(f'v_add3_u32 v4, v4, v5, s{sT1}')
    k(f'{rowd}:')
    k(f'v_mul_u32_u24 v4, 1152, v4')
    k(f'v_lshl_add_u32 v4, v3, 4, v4')
    for i in range(9):
        k(f'buffer_load_dwordx4 {vr(XD+4*i,4)}, v4, {sr(WO,4)}, 0 offen offset:{128*i}')
    k('v_mov_b32 v8, 0')
    k('v_mov_b32 v9, 0')
    k('s_waitcnt vmcnt(0)')
    for r in range(36):
        k(f'v_dot2c_f32_bf16 v{8+(r&1)}, s{sONE}, v{XD+r}')
    k('v_add_f32 v8, v8, v9')
    for qp in ('quad_perm:[1,0,3,2]', 'quad_perm:[2,3,0,1]', 'row_half_mirror'):
        k(f'v_add_f32_dpp v8, v8, v8 {qp} row_mask:0xf bank_mask:0xf')
    k(f'v_mul_f32 v8, {f32bits(1/576):#x}, v8')
    k('v_cvt_pk_bf16_f32 v9, v8, v8')
    k('v_lshlrev_b32 v10, 16, v9')
    k('v_sub_f32 v10, v8, v10')
    k('v_cvt_pk_bf16_f32 v10, v10, v10')
    k(f's_lshl_b32 s{sT1}, s{sT0}, 5')
    k(f's_add_u32 s{sT1}, s{sT1}, {RM:#x}')
    k('v_lshlrev_b32 v2, 1, v2')
    k(f'buffer_store_short v9, v2, {sr(WS,4)}, s{sT1} offen')
    k(f'buffer_store_short v10, v2, {sr(WS,4)}, s{sT1} offen offset:16')
    k('s_endpgm')
    k(f'{s2}:')
    s3 = k.label('side3')
    k(f's_cmp_ge_u32 s{sT0}, 76')
    k(f's_cbranch_scc1 {s3}')
    k(f's_sub_u32 s{sT0}, s{sT0}, 72')
    k(f's_mul_i32 s{sT0}, s{sT0}, {64*VP}')
    k(f's_add_u32 s{sT0}, s{sT0}, {VT + 9216:#x}')
    k(f'v_mul_u32_u24 v2, {VP}, v{vL}')
    for i in range(4): k(f'v_mov_b32 v{4+i}, s{sONE}')
    k(f'buffer_store_dwordx4 v[4:7], v2, {sr(WS,4)}, s{sT0} offen')
    k('s_endpgm')
    k(f'{s3}:')
    k(f's_cmp_ge_u32 s{sT0}, 108')
    k(f's_cbranch_scc1 {done}')
    k(f's_lshl_b32 s{sT0}, s{sT0}, 10')
    k(f's_add_u32 s{sT0}, s{sT0}, {FLG - 76*1024:#x}')
    k(f'v_lshlrev_b32 v2, 4, v{vL}')
    for i in range(4): k(f'v_mov_b32 v{4+i}, 0')
    k(f'buffer_store_dwordx4 v[4:7], v2, {sr(WS,4)}, s{sT0} offen sc1')
    k(f'{done}:')
    k('s_endpgm')
    return k.finish(vgpr=176, accum=176), (256, 256, K1_LDS)
```

```python
from asmlib import *
from layout import *
from k1 import srd
import os

QF = 0
OP = 12288
SCR = OP + 4*8*2560
K2_LDS = SCR + 65536
BIAS = 16.0
ORDER = "e0 c7' S8 e1 e2 c0 e3 e4 c1 S16 e5 e6 c2 e7 e8 PV1 c3 e9 e10 c4 e11 e12 PV0 c5 e13 e14 c6 e15".split()

def gen_k2():
    k = K('k2_attn_kernel')
    WS, SA, SB = 12, 16, 20
    (sWV, sHD, sQB, sT0, sT1, sT2, sKM, sKX, sV, sIT, sQM, sQX, sSRC, sSRC2, sPB, sDST, sDS1, sSC, sKM0, sKX0, sO, sTOK, sD1, sD2, sD3) = range(24, 49)
    mM0, mM1, mX0, mX1, mSL = 50, 52, 54, 64, 66
    sE = [6, 7, 8, 9]; sBS = 10
    vL, vMO, vXO, vVO, vLO, vRA, vRB, vRD, vQR, vQX, vOW, vOW2 = range(1, 13)
    T = 13
    Q0, Q1 = 20, 28
    S = 36
    P = 68
    O = 76
    O2 = 92
    KX = 108
    RP = 140
    R = 156
    km = lambda j: ar(4*j, 4)
    vv = lambda j, t: ar(64 + 8*j + 4*t, 4)
    done = k.label('done')
    k('s_cmp_ge_u32 s2, 256')
    k(f's_cbranch_scc1 {done}')
    k.kidx = 1; k.stamp(0); k.stamp(12, True)
    k('s_load_dwordx2 s[4:5], s[0:1], 72')
    k('s_load_dwordx4 s[56:59], s[0:1], 32')
    k('s_load_dwordx2 s[60:61], s[0:1], 48')
    k('s_load_dwordx2 s[62:63], s[0:1], 16')
    k(f'v_lshrrev_b32 v{T}, 6, v0')
    k(f'v_and_b32 v{vL}, 63, v0')
    k(f'v_readfirstlane_b32 s{sWV}, v{T}')
    k(f's_and_b32 s{sT0}, s2, 7')
    k(f's_lshl_b32 s{sT0}, s{sT0}, 2')
    k(f's_bfe_u32 s{sO}, s2, 0x20003')
    k(f's_add_u32 s{sHD}, s{sT0}, s{sO}')
    k(f's_lshr_b32 s{sQB}, s2, 5')
    k(f'v_lshrrev_b32 v{T}, 5, v{vL}')
    k(f'v_and_b32 v{T+1}, 31, v{vL}')
    k(f'v_lshlrev_b32 v{T+2}, 4, v{T+1}')
    k(f'v_lshl_add_u32 v{vMO}, v{T}, 15, v{T+2}')
    k(f'v_lshl_add_u32 v{vXO}, v{T}, 3, v{T+2}')
    k(f'v_lshlrev_b32 v{vLO}, 4, v{vL}')
    k(f's_mul_i32 s{sT0}, s{sHD}, 288')
    k(f'v_add_u32 v{vVO}, s{sT0}, v{T+2}')
    k(f'v_mov_b32 v{T+3}, 9216')
    k(f'v_cmp_eq_u32 vcc, 18, v{T+1}')
    k(f'v_cndmask_b32 v{vVO}, v{vVO}, v{T+3}, vcc')
    k(f'v_mov_b32 v{T+3}, {OOB:#x}')
    k(f'v_cmp_lt_u32 vcc, 18, v{T+1}')
    k(f'v_cndmask_b32 v{vVO}, v{vVO}, v{T+3}, vcc')
    k(f'v_mul_u32_u24 v{T+3}, {VP}, v{T}')
    k(f'v_add_u32 v{vVO}, v{vVO}, v{T+3}')
    k(f's_mul_i32 s{sT0}, s{sHD}, 18')
    k(f's_lshr_b32 s{sT0}, s{sT0}, 3')
    k(f's_cmp_eq_u32 s{sO}, 3')
    k(f's_cselect_b32 s{sT1}, 1, 0')
    k(f's_cselect_b32 s{sT2}, 0, 2')
    k(f's_cselect_b32 s{mSL}, -1, 0')
    k(f's_cselect_b32 s{mSL+1}, 0, -1')
    k(f's_cselect_b32 s{mX0}, 0, -1')
    k(f's_cselect_b32 s{mX1+1}, -1, 0')
    k(f's_add_u32 s{sT1}, s{sT1}, s{sT0}')
    k(f's_add_u32 s{sT2}, s{sT2}, s{sT0}')
    k(f's_lshl_b32 s{sT1}, s{sT1}, 15')
    k(f's_lshl_b32 s{sT2}, s{sT2}, 15')
    k(f's_cmp_eq_u32 s{sO}, 2')
    k(f's_cselect_b32 s{mX0+1}, -1, 0')
    k(f's_cselect_b32 s{mM1}, 0, -1')
    k(f's_sub_u32 s{sT0}, s{sO}, 1')
    k(f's_cmp_lt_u32 s{sT0}, 2')
    k(f's_cselect_b32 s{mM0}, 0, -1')
    k(f's_cselect_b32 s{mX1}, -1, 0')
    k(f's_mov_b32 s{mM0+1}, -1')
    k(f's_mov_b32 s{mM1+1}, -1')
    k(f's_add_u32 s{sKM0}, s{sT1}, {KI:#x}')
    k(f's_add_u32 s{sKX0}, s{sT2}, {KI:#x}')
    k(f's_lshl_b32 s{sT0}, s{sWV}, 13')
    k(f's_add_u32 s{sKM}, s{sKM0}, s{sT0}')
    k(f's_add_u32 s{sKX}, s{sKX0}, s{sT0}')
    k(f's_lshl_b32 s{sTOK}, s{sQB}, 8')
    k(f's_lshl_b32 s{sT0}, s{sWV}, 6')
    k(f's_add_u32 s{sTOK}, s{sTOK}, s{sT0}')
    k(f's_lshl_b32 s{sT0}, s{sTOK}, 4')
    k(f's_add_u32 s{sQM}, s{sT1}, s{sT0}')
    k(f's_add_u32 s{sQX}, s{sT2}, s{sT0}')
    k(f's_mul_i32 s{sV}, s{sWV}, {16*4*VP}')
    k(f's_add_u32 s{sV}, s{sV}, {VT:#x}')
    k('s_waitcnt lgkmcnt(0)')
    k.stamp(7)
    srd(k, WS, 4, WS_END)
    ws = sr(WS, 4)
    def kvload(j):
        out = [f'buffer_load_dwordx4 {km(j)}, v{vMO}, {ws}, s{sKM} offen offset:{512*(j&7)}',
               f'buffer_load_dwordx2 {vr(KX+2*j,2)}, v{vXO}, {ws}, s{sKX} offen offset:{512*(j&7)}',
               f'buffer_load_dwordx4 {vv(j,0)}, v{vVO}, {ws}, s{sV} offen',
               f's_add_u32 s{sV}, s{sV}, {2*VP}',
               f'buffer_load_dwordx4 {vv(j,1)}, v{vVO}, {ws}, s{sV} offen',
               f's_add_u32 s{sV}, s{sV}, {2*VP}']
        if j == 7: out += [f's_add_u32 s{sKM}, s{sKM}, 4096', f's_add_u32 s{sKX}, s{sKX}, 4096']
        return out
    for i in range(2):
        k(f'buffer_load_dwordx4 {vr(R+8*i,4)}, v{vMO}, {ws}, s{sQM} offen offset:{512*i}')
        k(f'buffer_load_dwordx2 {vr(R+8*i+4,2)}, v{vXO}, {ws}, s{sQX} offen offset:{512*i}')
    PF = int(os.environ.get('K2PF', '5'))
    for j in range(PF):
        for l in kvload(j): k(l)
    k(f's_lshl_b32 s{sT0}, s2, 2')
    k(f's_add_u32 s{sT0}, s{sT0}, s{sWV}')
    lgu = k.label('gu'); ldn = k.label('dn'); lset = k.label('set'); lset2 = k.label('set2'); lwx = k.label('wx')
    k(f's_lshl_b32 s{sSC}, s{sWV}, 14')
    k(f's_add_u32 s{sSC}, s{sSC}, {SCR}')
    k(f'v_lshrrev_b32 v{T+2}, 3, v{vL}')
    k(f'v_and_b32 v{T+3}, 7, v{vL}')
    k(f'v_bfe_u32 v{T+4}, v{vL}, 2, 2')
    k(f'v_and_b32 v{T+5}, 3, v{vL}')
    k(f'v_lshrrev_b32 v{T+6}, 4, v{vL}')
    k(f'v_lshl_add_u32 v{vRD}, v{T+4}, 7, s{sSC}')
    k(f's_cmp_lt_u32 s{sT0}, 648')
    k(f's_cbranch_scc1 {lgu}')
    k(f'v_lshl_add_u32 v{vRD}, v{T+6}, 10, v{vRD}')
    k(f'v_lshl_add_u32 v{vRD}, v{T+5}, 3, v{vRD}')
    k(f's_cmp_lt_u32 s{sT0}, 972')
    k(f's_cbranch_scc1 {ldn}')
    srd(k, SA, 62, 576*1152); srd(k, SB, 62, 576*1152)
    k(f's_sub_u32 s{sT0}, s{sT0}, 972')
    k(f's_mul_i32 s{sT1}, s{sT0}, 57')
    k(f's_lshr_b32 s{sT1}, s{sT1}, 9')
    k(f's_mul_i32 s{sT2}, s{sT1}, 9')
    k(f's_sub_u32 s{sT2}, s{sT0}, s{sT2}')
    k(f's_mul_i32 s{sDST}, s{sT2}, {4*WOP_T}')
    k(f's_lshl_b32 s{sDS1}, s{sT1}, 12')
    k(f's_add_u32 s{sDST}, s{sDST}, s{sDS1}')
    k(f's_add_u32 s{sDST}, s{sDST}, {WOP:#x}')
    k(f's_mov_b32 s{sDS1}, {WOP_T}')
    k(f's_lshl_b32 s{sSRC}, s{sT2}, 7')
    k(f's_cmp_ge_u32 s{sT1}, 5')
    k(f's_cselect_b32 s{sDST}, {OOB:#x}, s{sDST}')
    k(f's_cmp_eq_u32 s{sT1}, 4')
    k(f's_cbranch_scc1 {lwx}')
    k(f'v_lshrrev_b32 v{vRA}, 2, v{T+2}')
    k(f'v_lshlrev_b32 v{vRA}, 3, v{vRA}')
    k(f'v_and_b32 v{vRB}, 3, v{T+2}')
    k(f'v_add_u32 v{vRA}, v{vRA}, v{vRB}')
    k(f'v_mul_u32_u24 v{vRA}, 1152, v{vRA}')
    k(f'v_lshl_add_u32 v{vRA}, v{T+3}, 4, v{vRA}')
    k(f'v_add_u32 v{vRB}, {4*1152-1024}, v{vRA}')
    k(f's_mul_i32 s{sT1}, s{sT1}, {144*1152}')
    k(f's_add_u32 s{sSRC}, s{sSRC}, s{sT1}')
    k(f's_add_u32 s{sSRC2}, s{sSRC}, {18*1152}')
    k(f's_mov_b32 s{sPB}, {36*1152}')
    k(f's_branch {lset}')
    k(f'{lwx}:')
    k(f'v_lshrrev_b32 v{vRA}, 1, v{T+2}')
    k(f'v_mul_u32_u24 v{vRA}, 18, v{vRA}')
    k(f'v_and_b32 v{vRB}, 1, v{T+2}')
    k(f'v_add3_u32 v{vRA}, v{vRA}, v{vRB}, 16')
    k(f'v_mul_u32_u24 v{vRA}, 1152, v{vRA}')
    k(f'v_lshl_add_u32 v{vRA}, v{T+3}, 4, v{vRA}')
    k(f'v_add_u32 v{vRB}, {72*1152-1024}, v{vRA}')
    k(f's_add_u32 s{sSRC2}, s{sSRC}, {144*1152}')
    k(f's_mov_b32 s{sPB}, {288*1152}')
    k(f's_branch {lset}')
    k(f'{ldn}:')
    srd(k, SA, 60, 4608*1152); srd(k, SB, 60, 4608*1152)
    k(f's_sub_u32 s{sT0}, s{sT0}, 648')
    k(f's_mul_i32 s{sT1}, s{sT0}, 57')
    k(f's_lshr_b32 s{sT1}, s{sT1}, 9')
    k(f's_mul_i32 s{sT2}, s{sT1}, 9')
    k(f's_sub_u32 s{sT2}, s{sT0}, s{sT2}')
    k(f's_mul_i32 s{sDST}, s{sT1}, {4*9216}')
    k(f's_add_u32 s{sDST}, s{sDST}, {WD:#x}')
    k(f's_mov_b32 s{sBS}, 9216')
    for cc in range(4):
        k(f's_lshl_b32 s{sE[cc]}, s{sT2}, 2')
        k(f's_add_u32 s{sE[cc]}, s{sE[cc]}, {cc}')
        k(f's_mul_i32 s{sDS1}, s{sE[cc]}, 57')
        k(f's_lshr_b32 s{sDS1}, s{sDS1}, 9')
        k(f's_mul_i32 s{sDS1}, s{sDS1}, {144*9216 - 9*1024}')
        k(f's_lshl_b32 s{sE[cc]}, s{sE[cc]}, 10')
        k(f's_add_u32 s{sE[cc]}, s{sE[cc]}, s{sDS1}')
    k(f's_lshl_b32 s{sSRC}, s{sT2}, 7')
    k(f's_mul_i32 s{sT1}, s{sT1}, {128*1152}')
    k(f's_add_u32 s{sSRC}, s{sSRC}, s{sT1}')
    k(f'v_mul_u32_u24 v{vRA}, 1152, v{T+2}')
    k(f'v_lshl_add_u32 v{vRA}, v{T+3}, 4, v{vRA}')
    k(f'v_add_u32 v{vRB}, {8*1152-1024}, v{vRA}')
    k(f's_add_u32 s{sSRC2}, s{sSRC}, {16*1152}')
    k(f's_mov_b32 s{sPB}, {32*1152}')
    k(f's_branch {lset2}')
    k(f'{lgu}:')
    srd(k, SA, 56, 576*9216); srd(k, SB, 58, 576*9216)
    k(f's_mul_i32 s{sT1}, s{sT0}, 14564')
    k(f's_lshr_b32 s{sT1}, s{sT1}, 20')
    k(f's_mul_i32 s{sT2}, s{sT1}, 72')
    k(f's_sub_u32 s{sT2}, s{sT0}, s{sT2}')
    k(f's_mul_i32 s{sDST}, s{sT2}, {4*36*1024}')
    k(f's_lshl_b32 s{sDS1}, s{sT1}, 12')
    k(f's_add_u32 s{sDST}, s{sDST}, s{sDS1}')
    k(f's_add_u32 s{sDST}, s{sDST}, {WGU:#x}')
    k(f's_mov_b32 s{sDS1}, {36*1024}')
    k(f's_lshl_b32 s{sSRC}, s{sT2}, 7')
    k(f's_mul_i32 s{sT1}, s{sT1}, {64*9216}')
    k(f's_add_u32 s{sSRC}, s{sSRC}, s{sT1}')
    k(f's_mov_b32 s{sSRC2}, s{sSRC}')
    k(f'v_mul_u32_u24 v{vRA}, 9216, v{T+2}')
    k(f'v_lshl_add_u32 v{vRA}, v{T+3}, 4, v{vRA}')
    k(f'v_add_u32 v{vRB}, {8*9216-1024}, v{vRA}')
    k(f's_mov_b32 s{sPB}, {16*9216}')
    k(f'v_and_b32 v{T+4}, 1, v{T+6}')
    k(f'v_lshl_add_u32 v{vRD}, v{T+4}, 11, v{vRD}')
    k(f'v_lshrrev_b32 v{T+4}, 1, v{T+6}')
    k(f'v_lshl_add_u32 v{vRD}, v{T+4}, 10, v{vRD}')
    k(f'v_and_b32 v{T+4}, 1, v{T+5}')
    k(f'v_lshl_add_u32 v{vRD}, v{T+4}, 4, v{vRD}')
    k(f'v_lshrrev_b32 v{T+4}, 1, v{T+5}')
    k(f'v_lshl_add_u32 v{vRD}, v{T+4}, 3, v{vRD}')
    k(f'{lset}:')
    k(f's_mov_b32 s{sBS}, 1024')
    k(f's_mov_b32 s{sE[0]}, 0')
    for cc in range(1, 4): k(f's_add_u32 s{sE[cc]}, s{sE[cc-1]}, s{sDS1}')
    k(f'{lset2}:')
    k(f's_mul_i32 s{sDS1}, s{sBS}, 3')
    k(f's_sub_u32 s{sDST}, s{sDST}, s{sDS1}')
    k(f'v_subrev_u32 v{vRD}, 12288, v{vRD}')
    k(f's_mov_b32 s{sD3}, {OOB:#x}')
    k(f's_mov_b32 s{sD2}, s{sSC}')
    k(f'v_mov_b32 v{vQR}, v{vLO}')
    k(f'v_lshlrev_b32 v{vQX}, 3, v{vL}')
    k(f's_mul_i32 s{sT0}, s{sWV}, {8*2560}')
    k(f's_add_u32 s{sT0}, s{sT0}, {OP}')
    k(f'v_add_u32 v{vOW}, s{sT0}, v{vLO}')
    k(f's_mul_i32 s{sT0}, s{sWV}, 3072')
    k(f'v_add_u32 v{T+2}, s{sT0}, v{vQR}')
    k(f'v_add_u32 v{T+3}, s{sT0}, v{vQX}')
    k(f'v_mov_b32 v{T+4}, 0x3f80')
    patch = lambda j: f'v_cndmask_b32 v{KX+2*j+1}, v{KX+2*j+1}, v{T+4}, {sr(mSL,2)}'
    k(f's_waitcnt vmcnt({4*PF-2})')
    k.stamp(1)
    for i in range(2):
        q = R + 8*i
        k(f'v_cndmask_b32 v{q}, 0, v{q}, {sr(mM0,2)}')
        k(f'v_cndmask_b32 v{q+1}, 0, v{q+1}, {sr(mM1,2)}')
        k(f'v_cndmask_b32 v{q+4}, 0, v{q+4}, {sr(mX0,2)}')
        k(f'v_cndmask_b32 v{q+5}, 0, v{q+5}, {sr(mX1,2)}')
    k(patch(0))
    for i in range(2):
        q = R + 8*i; s = S + 16*i
        k(f'v_mfma_f32_32x32x8_bf16 {vr(s,16)}, {vr(KX,2)}, {vr(q+4,2)}, 0')
    for i in range(2):
        q = R + 8*i; s = S + 16*i
        k(f'v_mfma_f32_32x32x16_bf16 {vr(s,16)}, {km(0)}, {vr(q,4)}, {vr(s,16)}')
        k(f'ds_write_b128 v{T+2}, {vr(q,4)} offset:{1536*i}')
    for i in range(2):
        q = R + 8*i; s = S + 16*i
        k(f'v_max3_f32 v{s}, v{s}, v{s+1}, v{s+2}')
        k(f'v_max3_f32 v{s+3}, v{s+3}, v{s+4}, v{s+5}')
        k(f'v_max3_f32 v{s+6}, v{s+6}, v{s+7}, v{s+8}')
        k(f'v_max3_f32 v{s}, v{s}, v{s+3}, v{s+6}')
        k(f'v_sub_f32 v{s}, {f32bits(-BIAS):#x}, v{s}')
        k(f'v_cvt_pk_bf16_f32 v{s}, v{s}, 0')
        k(f'v_cndmask_b32 v{q+5}, v{q+5}, v{s}, {sr(mSL,2)}')
        k(f'ds_write_b64 v{T+3}, {vr(q+4,2)} offset:{1536*i+1024}')
    k('s_waitcnt lgkmcnt(0)')
    k('s_barrier')
    def qread(dst, off): return [f'ds_read_b128 {vr(dst,4)}, v{vQR} offset:{off}', f'ds_read_b64 {vr(dst+4,2)}, v{vQX} offset:{off+1024}']
    for l in qread(Q1, 0): k(l)
    k('s_waitcnt lgkmcnt(0)')
    k(f'v_mfma_f32_32x32x8_bf16 {vr(S,16)}, {vr(KX,2)}, {vr(Q1+4,2)}, 0')
    k(f'v_mfma_f32_32x32x16_bf16 {vr(S,16)}, {km(0)}, {vr(Q1,4)}, {vr(S,16)}')
    k.stamp(2)
    def owrite(off0):
        return [f'ds_write_b128 v{vOW}, {vr(O,4)} offset:{off0}', f'ds_write_b128 v{vOW}, {vr(O+4,4)} offset:{off0+1024}',
                's_mov_b32 exec_hi, 0', f'ds_write_b128 v{vOW}, {vr(O+8,4)} offset:{off0+2048}', 's_mov_b32 exec_hi, -1']
    def body(mode):
        first = mode == 'first'
        for u in range(16):
            s = S + 16*(u&1); s2 = S + 16*((u+1)&1)
            nu = (u+1) & 15; pu = (u-1) & 15
            qn = Q0 if u == 15 else Q1
            hooks = {}
            pre = {}
            def after(tok, l): hooks.setdefault(tok, []).extend(l)
            def before(tok, l): pre.setdefault(tok, []).extend(l)
            if first:
                if u + PF < 16:
                    l = kvload(u + PF)
                    after('e1', l[:1]); after('e4', l[1:2]); after('e7', l[2:4]); after('e10', l[4:])
                if u < 15:
                    hi = min(u + PF - 1, 15)
                    before('S8', [f's_waitcnt vmcnt({2 + 4*(hi - (u+1))})', patch(u+1)])
                else:
                    before('PV0', ['s_waitcnt vmcnt(0)'])
            if u == 1 and not first:
                after('e0', owrite(0)[:1]); after('e2', owrite(0)[1:2]); after('e4', owrite(0)[2:])
                after('e6', [f'v_add_u32 v{vOW}, 2560, v{vOW}'])
                before('PV0', ['s_waitcnt lgkmcnt(0)'])
            if u == 3: after('e1', qread(Q0, 1536))
            if u == 15:
                before('S8', ['s_waitcnt lgkmcnt(0)'])
                after('e1', qread(Q1, 1536))
                after('e5', [f'v_add_u32 v{vQR}, 1536, v{vQR}', f'v_add_u32 v{vQX}, 1536, v{vQX}'])
            if u == 0: before('S8', ['s_waitcnt lgkmcnt(0)'])
            if mode == 'rp':
                if u == 2: before('e3', ['s_waitcnt vmcnt(16)'])
                if 2 <= u < 6:
                    cc = u - 2
                    after('e3', [f'ds_read_b64_tr_b16 {vr(RP+4*cc,2)}, v{vRD} offset:{32*cc}'])
                    after('e9', [f'ds_read_b64_tr_b16 {vr(RP+4*cc+2,2)}, v{vRD} offset:{32*cc+512}'])
                if 7 <= u < 11:
                    cc = u - 7
                    if cc == 0: before('e9', ['s_waitcnt lgkmcnt(0)', f'v_add_u32 v{vRD}, 4096, v{vRD}',
                                              f's_cmp_le_u32 s{sIT}, 4', f's_cselect_b32 s{sD1}, s{sDST}, s{sD3}', f's_add_u32 s{sDST}, s{sDST}, s{sBS}'])
                    after('e9', [f's_add_u32 s{sDS1}, s{sD1}, s{sE[cc]}', f'buffer_store_dwordx4 {vr(RP+4*cc,4)}, v{vLO}, {ws}, s{sDS1} offen sc1'])
                if 11 <= u < 15:
                    i = u - 11
                    if i & 1 == 0: before('e9', [f's_add_u32 m0, s{sSC}, {1024*i}'])
                    l = [f'buffer_load_dwordx4 v{vRB if i&1 else vRA}, {sr(SA if i < 2 else SB,4)}, s{sSRC if i < 2 else sSRC2} offen offset:{1024*(i&1)} lds']
                    if i == 3: l += [f's_add_u32 s{sSRC}, s{sSRC}, s{sPB}', f's_add_u32 s{sSRC2}, s{sSRC2}, s{sPB}', f's_add_u32 s{sSC}, s{sSC}, 4096',
                                     f's_cmp_le_u32 s{sIT}, 4', f's_cselect_b32 s{sSRC}, s{sD3}, s{sSRC}', f's_cselect_b32 s{sSRC2}, s{sD3}, s{sSRC2}',
                                     f's_cselect_b32 s{sSC}, s{sD2}, s{sSC}']
                    after('e9', l)
            for tok in ORDER:
                for l in pre.get(tok, []): k(l)
                if tok[0] == 'e': i = int(tok[1:]); k(f'v_exp_f32 v{s+i}, v{s+i}')
                elif tok == "c7'":
                    if not (first and u == 0): k(f'v_cvt_pk_bf16_f32 v{P+7}, v{s2+14}, v{s2+15}')
                elif tok[0] == 'c': i = int(tok[1:]); k(f'v_cvt_pk_bf16_f32 v{P+i}, v{s+2*i}, v{s+2*i+1}')
                elif tok == 'PV1':
                    if not (first and u == 0):
                        o = O2 if u == 1 else O
                        k(f'v_mfma_f32_32x32x16_bf16 {vr(o,16)}, {vv(pu,1)}, {vr(P+4,4)}, {vr(o,16)}')
                elif tok == 'PV0':
                    d = O2 if u == 0 else O
                    c = '0' if u == 0 else (vr(O2,16) if u == 1 else vr(O,16))
                    k(f'v_mfma_f32_32x32x16_bf16 {vr(d,16)}, {vv(u,0)}, {vr(P,4)}, {c}')
                elif tok == 'S8': k(f'v_mfma_f32_32x32x8_bf16 {vr(s2,16)}, {vr(KX+2*nu,2)}, {vr(qn+4,2)}, 0')
                elif tok == 'S16': k(f'v_mfma_f32_32x32x16_bf16 {vr(s2,16)}, {km(nu)}, {vr(qn,4)}, {vr(s2,16)}')
                for l in hooks.get(tok, []): k(l)
    def loop(mode, n):
        lp = k.label('loop')
        k(f's_mov_b32 s{sIT}, {n}')
        k(f'{lp}:')
        body(mode)
        k(f's_sub_u32 s{sIT}, s{sIT}, 1')
        k(f's_cmp_lg_u32 s{sIT}, 0')
        k(f's_cbranch_scc1 {lp}')
    body('first')
    k.stamp(3)
    loop('rp', 7)
    k.stamp(4)
    k(f'v_cvt_pk_bf16_f32 v{P+7}, v{S+16+14}, v{S+16+15}')
    k(f'v_mfma_f32_32x32x16_bf16 {vr(O,16)}, {vv(15,1)}, {vr(P+4,4)}, {vr(O,16)}')
    k(f's_mul_i32 s{sT0}, s{sWV}, 5120')
    k(f's_add_u32 s{sT0}, s{sT0}, {OP}')
    k(f'v_add_u32 v{T}, s{sT0}, v{vLO}')
    k(f'v_and_b32 v{T+1}, 511, v{vLO}')
    k(f'v_add_u32 v{T+1}, s{sT0}, v{T+1}')
    k(f'v_bfe_u32 v{T+2}, v{vL}, 4, 1')
    k(f'v_mul_u32_u24 v{T+2}, {18*1024}, v{T+2}')
    k(f'v_and_b32 v{T+3}, 15, v{vL}')
    k(f'v_lshl_add_u32 v{T+2}, v{T+3}, 4, v{T+2}')
    k(f'v_lshrrev_b32 v{T+3}, 5, v{vL}')
    k(f'v_lshl_add_u32 v{T+3}, v{T+3}, 8, v{T+2}')
    k(f's_lshr_b32 s{sT0}, s{sTOK}, 4')
    k(f's_mul_i32 s{sT0}, s{sT0}, {18*1024}')
    k(f's_add_u32 s{sT0}, s{sT0}, {OI:#x}')
    k(f's_lshl_b32 s{sD1}, s{sHD}, 9')
    k(f's_add_u32 s{sD1}, s{sD1}, s{sT0}')
    k(f's_lshr_b32 s{sD2}, s{sHD}, 2')
    k(f's_lshl_b32 s{sD2}, s{sD2}, 8')
    k(f's_lshl_b32 s{sT2}, s{sO}, 2')
    k(f's_add_u32 s{sD2}, s{sD2}, s{sT2}')
    k(f's_add_u32 s{sD2}, s{sD2}, s{sT0}')
    k(f's_add_u32 s{sD2}, s{sD2}, {16*1024}')
    for l in owrite(0): k(l)
    k(f's_mov_b32 s{sIT}, 2')
    k('s_waitcnt lgkmcnt(0)')
    k('s_barrier')
    k.stamp(5)
    red = k.label('red'); slow = k.label('slow'); fin = k.label('fin')
    k(f'{red}:')
    for src in range(4):
        k(f'ds_read_b128 {vr(R+12*src,4)}, v{T} offset:{src*20480}')
        k(f'ds_read_b128 {vr(R+12*src+4,4)}, v{T} offset:{src*20480+1024}')
        k(f'ds_read_b128 {vr(R+12*src+8,4)}, v{T+1} offset:{src*20480+2048}')
    k(f'v_add_u32 v{T}, 2560, v{T}')
    k(f'v_add_u32 v{T+1}, 2560, v{T+1}')
    k('s_waitcnt lgkmcnt(6)')
    for i in range(0, 12, 2): k(f'v_pk_add_f32 {vr(R+i,2)}, {vr(R+i,2)}, {vr(R+12+i,2)}')
    k('s_waitcnt lgkmcnt(0)')
    for i in range(0, 12, 2): k(f'v_pk_add_f32 {vr(R+24+i,2)}, {vr(R+24+i,2)}, {vr(R+36+i,2)}')
    for i in range(0, 12, 2): k(f'v_pk_add_f32 {vr(R+i,2)}, {vr(R+i,2)}, {vr(R+24+i,2)}')
    k(f'v_pk_add_f32 {vr(R+12,2)}, {vr(R,2)}, {vr(R+2,2)}')
    k(f'v_pk_add_f32 {vr(R+14,2)}, {vr(R+4,2)}, {vr(R+6,2)}')
    k(f'v_pk_add_f32 {vr(R+12,2)}, {vr(R+12,2)}, {vr(R+8,2)}')
    k(f'v_pk_add_f32 {vr(R+12,2)}, {vr(R+12,2)}, {vr(R+14,2)}')
    k(f'v_add_f32 v{R+12}, v{R+12}, v{R+13}')
    k(f'v_mov_b32 v{R+13}, 0x1f8')
    k(f'v_cmp_class_f32 s[68:69], v{R+12}, v{R+13}')
    k(f'v_cmp_le_f32 vcc, {f32bits(2.0**-24):#x}, v{R+10}')
    k(f's_and_b64 s[68:69], s[68:69], vcc')
    k(f'v_cmp_ge_f32 vcc, {f32bits(2.0**90):#x}, v{R+10}')
    k(f's_and_b64 s[68:69], s[68:69], vcc')
    k(f's_cmp_eq_u64 s[68:69], -1')
    k(f's_cbranch_scc0 {slow}')
    k(f'{fin}:')
    k(f'v_rcp_f32 v{R+10}, v{R+10}')
    for i in range(0, 10, 2): k(f'v_pk_mul_f32 {vr(R+i,2)}, {vr(R+i,2)}, {vr(R+10,2)} op_sel_hi:[1,0]')
    for i in range(5): k(f'v_cvt_pk_bf16_f32 v{R+16+i}, v{R+2*i}, v{R+2*i+1}')
    k(f'buffer_store_dwordx4 {vr(R+16,4)}, v{T+3}, {ws}, s{sD1} offen sc1')
    k('s_mov_b32 exec_hi, 0')
    k(f'buffer_store_dword v{R+20}, v{T+2}, {ws}, s{sD2} offen')
    k('s_mov_b32 exec_hi, -1')
    k(f's_add_u32 s{sD1}, s{sD1}, {36*1024}')
    k(f's_add_u32 s{sD2}, s{sD2}, {36*1024}')
    k(f's_sub_u32 s{sIT}, s{sIT}, 1')
    k(f's_cmp_lg_u32 s{sIT}, 0')
    k(f's_cbranch_scc1 {red}')
    k('s_waitcnt vmcnt(0)') if K.prof else None
    k.stamp(6); k.stamp(13, True); k.stamp_flush(ws, sWV)
    k(f'{done}:')
    k('s_endpgm')
    k(f'{slow}:')
    k(f's_lshl_b32 s{sT0}, s{sWV}, 1')
    k(f's_add_u32 s{sT0}, s{sT0}, 2')
    k(f's_sub_u32 s{sT0}, s{sT0}, s{sIT}')
    k(f's_mul_i32 s{sT0}, s{sT0}, 1536')
    k(f'v_add_u32 v{vQR}, s{sT0}, v{vLO}')
    k(f'v_lshl_add_u32 v{vQX}, v{vL}, 3, s{sT0}')
    for l in qread(Q1, 0): k(l)
    k(f'v_mov_b32 v{T+5}, 0xff800000')
    k('s_waitcnt lgkmcnt(0)')
    k(f'v_cndmask_b32 v{Q1+5}, v{Q1+5}, 0, {sr(mSL,2)}')
    for i in range(16): k(f'v_mov_b32 v{O+i}, 0')
    for ps in range(2):
        lp = k.label('sl')
        k(f's_mov_b32 s{sKM}, s{sKM0}')
        k(f's_mov_b32 s{sKX}, s{sKX0}')
        k(f's_mov_b32 s{sV}, {VT:#x}')
        k(f's_mov_b32 s{sT1}, 64')
        k(f'{lp}:')
        k(f'buffer_load_dwordx4 {km(0)}, v{vMO}, {ws}, s{sKM} offen')
        k(f'buffer_load_dwordx2 {vr(KX,2)}, v{vXO}, {ws}, s{sKX} offen')
        if ps:
            k(f'buffer_load_dwordx4 {vv(0,0)}, v{vVO}, {ws}, s{sV} offen')
            k(f's_add_u32 s{sV}, s{sV}, {2*VP}')
            k(f'buffer_load_dwordx4 {vv(0,1)}, v{vVO}, {ws}, s{sV} offen')
            k(f's_add_u32 s{sV}, s{sV}, {2*VP}')
        k('s_waitcnt vmcnt(0)')
        k(f'v_mfma_f32_32x32x8_bf16 {vr(S,16)}, {vr(KX,2)}, {vr(Q1+4,2)}, 0')
        k(f'v_mfma_f32_32x32x16_bf16 {vr(S,16)}, {km(0)}, {vr(Q1,4)}, {vr(S,16)}')
        if ps == 0:
            for i in range(8): k(f'v_max3_f32 v{T+5}, v{T+5}, v{S+2*i}, v{S+2*i+1}')
        else:
            for i in range(16): k(f'v_sub_f32 v{S+i}, v{S+i}, v{T+5}')
            for i in range(16): k(f'v_exp_f32 v{S+i}, v{S+i}')
            for i in range(8): k(f'v_cvt_pk_bf16_f32 v{P+i}, v{S+2*i}, v{S+2*i+1}')
            k(f'v_mfma_f32_32x32x16_bf16 {vr(O,16)}, {vv(0,0)}, {vr(P,4)}, {vr(O,16)}')
            k(f'v_mfma_f32_32x32x16_bf16 {vr(O,16)}, {vv(0,1)}, {vr(P+4,4)}, {vr(O,16)}')
        k(f's_add_u32 s{sKM}, s{sKM}, 512')
        k(f's_add_u32 s{sKX}, s{sKX}, 512')
        k(f's_sub_u32 s{sT1}, s{sT1}, 1')
        k(f's_cmp_lg_u32 s{sT1}, 0')
        k(f's_cbranch_scc1 {lp}')
        if ps == 0:
            k(f'v_mov_b32 v{T+6}, v{T+5}')
            k(f'v_permlane32_swap_b32 v{T+5}, v{T+6}')
            k(f'v_max_f32 v{T+5}, v{T+5}, v{T+6}')
    for i in range(11): k(f'v_mov_b32 v{R+i}, v{O+i}')
    k(f'v_mov_b32 v{R+11}, v{O+10}')
    k(f'v_permlane32_swap_b32 v{R+10}, v{R+11}')
    k(f's_branch {fin}')
    return k.finish(vgpr=204+192, accum=204), (256, 256, K2_LDS)
```

```python
from asmlib import *
from layout import *
from k1 import srd

PITCH = 336
RED_W = 64 * PITCH
MU_OFF = 4 * RED_W
K3_LDS = 4 * RED_W + 4 * 64 * 8
K5_LDS = 4 * RED_W

def common_head(k, done, sWV, sTB, sCB, sCT0, sNP, vL, T):
    k('s_cmp_ge_u32 s2, 256')
    k(f's_cbranch_scc1 {done}')
    k(f'v_lshrrev_b32 v{T}, 6, v0')
    k(f'v_and_b32 v{vL}, 63, v0')
    k(f'v_readfirstlane_b32 s{sWV}, v{T}')
    k(f's_and_b32 s{sTB}, s2, 7')
    k(f's_lshl_b32 s{sTB}, s{sTB}, 2')
    k(f's_bfe_u32 s{sCB}, s2, 0x20003')
    k(f's_add_u32 s{sTB}, s{sTB}, s{sCB}')
    k(f's_lshr_b32 s{sCB}, s2, 5')
    k(f's_mul_i32 s{sCT0}, s{sCB}, 5')
    k(f's_lshl_b32 s{sNP}, s{sCB}, 2')
    k(f's_add_u32 s{sNP}, s{sNP}, 4')
    k(f's_min_u32 s{sCT0}, s{sCT0}, s{sNP}')
    k(f's_cmp_lt_u32 s{sCB}, 4')
    k(f's_cselect_b32 s{sNP}, 10, 8')

def stream_offsets(k, vB, vA, vL, sTB, sCT0, sNP, sT0, nks, baseB, baseA, nka=None):
    nka = nka or nks
    k(f's_mul_i32 s{sT0}, s{sTB}, {4*nks*1024}')
    k(f's_add_u32 s{sT0}, s{sT0}, {baseB:#x}')
    k(f'v_lshl_add_u32 v{vB}, v{vL}, 4, s{sT0}')
    for t in range(1, 4): k(f'v_add_u32 v{vB+t}, {t*nks*1024}, v{vB}')
    k(f's_mul_i32 s{sT0}, s{sCT0}, {nka*1024}')
    k(f's_add_u32 s{sT0}, s{sT0}, {baseA:#x}')
    k(f'v_lshl_add_u32 v{vA}, v{vL}, 4, s{sT0}')
    for c in range(1, 4): k(f'v_add_u32 v{vA+c}, {c*nka*1024}, v{vA}')
    k(f's_mov_b32 s{sT0}, {OOB:#x}')
    k(f's_cmp_eq_u32 s{sNP}, 10')
    k(f's_cselect_b32 s{sT0}, {4*nka*1024}, s{sT0}')
    k(f'v_add_u32 v{vA+4}, s{sT0}, v{vA}')

def write_partials(k, accf, vL, sWV, sT0, T):
    k(f's_mul_i32 s{sT0}, s{sWV}, {RED_W}')
    k(f'v_and_b32 v{T}, 15, v{vL}')
    k(f'v_mul_u32_u24 v{T}, {PITCH}, v{T}')
    k(f'v_lshrrev_b32 v{T+1}, 4, v{vL}')
    k(f'v_lshl_add_u32 v{T}, v{T+1}, 4, v{T}')
    k(f'v_add_u32 v{T}, s{sT0}, v{T}')
    for t in range(4):
        for c in range(5):
            k(f'ds_write_b128 v{T}, {accf(t,c)} offset:{16*t*PITCH + 64*c}')

def reduce_piece(k, i, vRA, R):
    for w in range(4):
        for hh in range(2):
            k(f'ds_read_b128 {vr(R+8*w+4*hh,4)}, v{vRA} offset:{w*RED_W + 128*i + 16*hh}')

def sum_piece(k, R):
    for j in range(8): k(f'v_add_f32 v{R+j}, v{R+j}, v{R+8+j}')
    for j in range(8): k(f'v_add_f32 v{R+16+j}, v{R+16+j}, v{R+24+j}')
    for j in range(8): k(f'v_add_f32 v{R+j}, v{R+j}, v{R+16+j}')

def gen_k3():
    k = K('k3_wo_kernel')
    WS, X = 12, 16
    sWV, sTB, sCB, sCT0, sNP, sT0, sT1, sKS, sKS5, sMASK = 24, 25, 26, 27, 28, 29, 30, 31, 32, 33
    vL, vB, vA, vRMo, T = 1, 2, 6, 11, 12
    BUF = 24
    XR = 224
    done = k.label('done')
    k('s_load_dwordx2 s[4:5], s[0:1], 72')
    k('s_load_dwordx2 s[6:7], s[0:1], 0')
    k.kidx = 2; k.stamp(0); k.stamp(12, True)
    common_head(k, done, sWV, sTB, sCB, sCT0, sNP, vL, T)
    stream_offsets(k, vB, vA, vL, sTB, sCT0, sNP, sT0, 18, OI, WOP, 20)
    k(f's_mul_i32 s{sKS}, s{sWV}, 5')
    k(f's_min_u32 s{sKS}, s{sKS}, 14')
    k(f's_lshl_b32 s{sT1}, s{sKS}, 7')
    k(f's_add_u32 s{sT1}, s{sT1}, {RM:#x}')
    k(f's_lshl_b32 s{sKS}, s{sKS}, 10')
    k(f's_add_u32 s{sKS5}, s{sKS}, 4096')
    k(f's_cmp_lt_u32 s{sWV}, 2')
    k(f's_cselect_b32 s{sKS5}, s{sKS5}, {OOB:#x}')
    k(f'v_and_b32 v{T}, 15, v{vL}')
    k(f'v_min_u32 v{T}, 1, v{T}')
    k(f'v_lshrrev_b32 v{T+1}, 4, v{vL}')
    k(f'v_lshlrev_b32 v{T+1}, 5, v{T+1}')
    k(f'v_lshl_add_u32 v{vRMo}, v{T}, 4, v{T+1}')
    k(f's_mov_b32 s{sMASK}, 0xffff0000')
    k('s_waitcnt lgkmcnt(0)')
    k.stamp(7)
    srd(k, WS, 4, WS_END); srd(k, X, 6, 2048*1152)
    ws = sr(WS, 4)
    fb = lambda s, t: BUF + 40*s + 4*t
    fa = lambda s, c: BUF + 40*s + 16 + 4*c
    for s in range(5):
        so, im = (sKS, 1024*s) if s < 4 else (sKS5, 0)
        for t in range(4): k(f'buffer_load_dwordx4 {vr(fb(s,t),4)}, v{vB+t}, {ws}, s{so} offen offset:{im}')
        for c in range(5): k(f'buffer_load_dwordx4 {vr(fa(s,c),4)}, v{vA+c}, {ws}, s{so} offen offset:{im}')
        if s < 4: k(f'buffer_load_dwordx4 {vr(fa(s,5),4)}, v{vRMo}, {ws}, s{sT1} offen offset:{128*s}')
        else:
            k(f's_cmp_lt_u32 s{sWV}, 2')
            k(f's_cselect_b32 s{sT0}, 512, 0')
            k(f's_add_u32 s{sT1}, s{sT1}, s{sT0}')
            k(f'buffer_load_dwordx4 {vr(fa(s,5),4)}, v{vRMo}, {ws}, s{sT1} offen')
    vTok, vQ, vXo, vMX = 16, 17, 18, 19
    k(f'v_lshrrev_b32 v{vTok}, 2, v0')
    k(f'v_and_b32 v{vQ}, 3, v0')
    k(f'v_mul_u32_u24 v{vXo}, 1152, v{vTok}')
    k(f'v_lshl_add_u32 v{vXo}, v{vQ}, 4, v{vXo}')
    k(f's_mul_i32 s{sT0}, s{sTB}, {64*1152}')
    k(f's_lshl_b32 s{sT1}, s{sCT0}, 5')
    k(f's_add_u32 s{sT0}, s{sT0}, s{sT1}')
    for i in range(3): k(f'buffer_load_dwordx4 {vr(XR+4*i,4)}, v{vXo}, {sr(X,4)}, s{sT0} offen offset:{64*i}')
    k(f's_lshl_b32 s{sT1}, s{sTB}, 8')
    k(f's_add_u32 s{sT1}, s{sT1}, {MUX:#x}')
    k(f'v_lshlrev_b32 v20, 2, v{vTok}')
    k(f'buffer_load_dword v{vMX}, v20, {ws}, s{sT1} offen')
    acc = lambda t, c: ar(4*(6*t+c), 4)
    for s in range(5):
        k(f's_waitcnt vmcnt({10*(4-s)+4})')
        if s == 0: k.stamp(1)
        for c in range(6):
            for t in range(4):
                k(f'v_mfma_f32_16x16x32_bf16 {acc(t,c)}, {vr(fa(s,c),4)}, {vr(fb(s,t),4)}, {acc(t,c) if s else 0}')
    k.stamp(3)
    write_partials(k, acc, vL, sWV, sT0, T)
    k(f's_lshl_b32 s{sT0}, s{sWV}, 9')
    k(f's_add_u32 s{sT0}, s{sT0}, {MU_OFF}')
    k(f'v_lshl_add_u32 v{T+2}, v{vL}, 3, s{sT0}')
    k('s_mov_b64 exec, 0xffff')
    for t in range(4):
        k(f'ds_write_b64 v{T+2}, {ar(4*(6*t+5),2)} offset:{128*t}')
    k('s_mov_b64 exec, -1')
    vRA = T + 3
    k(f'v_mul_u32_u24 v{vRA}, {PITCH}, v{vTok}')
    k(f'v_lshl_add_u32 v{vRA}, v{vQ}, 5, v{vRA}')
    k(f'v_lshlrev_b32 v21, 9, v{vQ}')
    k(f'v_lshl_add_u32 v21, v{vTok}, 3, v21')
    k(f'v_add_u32 v21, {MU_OFF}, v21')
    k('s_waitcnt lgkmcnt(0)')
    k('s_barrier')
    k.stamp(4)
    k(f'ds_read_b64 v[22:23], v21')
    R = [BUF, BUF+32, BUF+64]
    reduce_piece(k, 0, vRA, R[0])
    k('s_waitcnt lgkmcnt(8)')
    k('v_add_f32 v22, v22, v23')
    for qp in ('[1,0,3,2]', '[2,3,0,1]'):
        k(f'v_add_f32_dpp v22, v22, v22 quad_perm:{qp} row_mask:0xf bank_mask:0xf')
    k('s_waitcnt vmcnt(0)')
    k(f'v_add_f32 v22, v22, v{vMX}')
    k('v_mov_b32 v23, 0')
    k(f'v_lshrrev_b32 v21, 5, v{vTok}')
    k(f'v_mul_u32_u24 v21, {36*1024}, v21')
    k(f'v_and_b32 v{T}, 31, v{vTok}')
    k(f'v_lshl_add_u32 v21, v{T}, 4, v21')
    k(f'v_lshl_add_u32 v21, v{vQ}, 9, v21')
    k(f's_mul_i32 s{sT0}, s{sTB}, {72*1024}')
    k(f's_lshl_b32 s{sT1}, s{sCT0}, 10')
    k(f's_add_u32 s{sT0}, s{sT0}, s{sT1}')
    k(f's_add_u32 s{sT0}, s{sT0}, {HB:#x}')
    k(f's_add_u32 s{sT1}, s{sT0}, 4096')
    for i in range(3):
        k('s_waitcnt lgkmcnt(0)')
        if i < 2: reduce_piece(k, i+1, vRA, R[i+1])
        r = R[i]
        sum_piece(k, r)
        if i == 2:
            k(f'v_add_u32 v{T}, 8, v{vQ}')
            k(f'v_cmp_gt_u32 vcc, s{sNP}, v{T}')
            k('s_and_saveexec_b64 s[40:41], vcc')
        for j in range(4):
            k(f'v_lshlrev_b32 v{r+8+2*j}, 16, v{XR+4*i+j}')
            k(f'v_and_b32 v{r+9+2*j}, s{sMASK}, v{XR+4*i+j}')
        for j in range(8): k(f'v_add_f32 v{r+j}, v{r+j}, v{r+8+j}')
        for j in range(8): k(f'v_sub_f32 v{r+j}, v{r+j}, v22')
        for j in range(8): k(f'v_fmac_f32 v23, v{r+j}, v{r+j}')
        for j in range(4): k(f'v_cvt_pk_bf16_f32 v{r+16+j}, v{r+2*j}, v{r+2*j+1}')
        if i < 2: k(f'buffer_store_dwordx4 {vr(r+16,4)}, v21, {ws}, s{sT0} offen offset:{2048*i} sc1')
        else:
            k(f'buffer_store_dwordx4 {vr(r+16,4)}, v21, {ws}, s{sT1} offen sc1')
            k('s_mov_b64 exec, -1')
    for qp in ('[1,0,3,2]', '[2,3,0,1]'):
        k(f'v_add_f32_dpp v23, v23, v23 quad_perm:{qp} row_mask:0xf bank_mask:0xf')
    k(f's_lshl_b32 s{sT0}, s{sTB}, 8')
    k(f's_lshl_b32 s{sT1}, s{sTB}, 11')
    k(f's_lshl_b32 s{sKS}, s{sCB}, 2')
    k(f's_add_u32 s{sT1}, s{sT1}, s{sKS}')
    k(f's_add_u32 s{sT1}, s{sT1}, {SS:#x}')
    k(f'v_lshlrev_b32 v21, 5, v{vTok}')
    k(f'buffer_store_dword v23, v21, {ws}, s{sT1} offen')
    k('s_waitcnt vmcnt(0)') if K.prof else None
    k.stamp(5); k.stamp(13, True); k.stamp_flush(ws, sWV)
    k('s_mov_b64 exec, -1') if K.prof else None
    k(f's_cmp_lg_u32 s{sCB}, 0')
    k(f's_cbranch_scc1 {done}')
    k(f's_add_u32 s{sT0}, s{sT0}, {MU:#x}')
    k(f'buffer_store_dword v22, v20, {ws}, s{sT0} offen')
    k(f'{done}:')
    k('s_endpgm')
    return k.finish(vgpr=240+96, accum=240), (256, 256, K3_LDS)

def gen_k5():
    k = K('k5_down_kernel')
    WS, OUT = 12, 16
    sWV, sTB, sCB, sCT0, sNP, sT0, sT1, sKS, sKS2, sMASK, sIT = 24, 25, 26, 27, 28, 29, 30, 31, 32, 33, 34
    vL, vB, vA, T = 1, 2, 6, 12
    BUF = 24
    HR = 240
    D = 6
    done = k.label('done')
    k('s_load_dwordx2 s[4:5], s[0:1], 72')
    k('s_load_dwordx2 s[6:7], s[0:1], 56')
    k.kidx = 4; k.stamp(0); k.stamp(12, True)
    common_head(k, done, sWV, sTB, sCB, sCT0, sNP, vL, T)
    stream_offsets(k, vB, vA, vL, sTB, sCT0, sNP, sT0, 144, ACT, WD)
    k(f's_mul_i32 s{sKS}, s{sWV}, {36*1024}')
    k(f's_add_u32 s{sKS2}, s{sKS}, 3072')
    k(f's_mov_b32 s{sMASK}, 0xffff0000')
    k('s_waitcnt lgkmcnt(0)')
    k.stamp(7)
    srd(k, WS, 4, WS_END); srd(k, OUT, 6, 2048*1152)
    ws = sr(WS, 4)
    fb = lambda s, t: BUF + 36*s + 4*t
    fa = lambda s, c: BUF + 36*s + 16 + 4*c
    def loads(s):
        so, im = (sKS, 1024*s) if s < 3 else (sKS2, 1024*(s-3))
        out = []
        for c in range(5): out.append(f'buffer_load_dwordx4 {vr(fa(s,c),4)}, v{vA+c}, {ws}, s{so} offen offset:{im}')
        for t in range(4): out.append(f'buffer_load_dwordx4 {vr(fb(s,t),4)}, v{vB+t}, {ws}, s{so} offen offset:{im}')
        return out
    for s in range(D - 1):
        for l in loads(s): k(l)
    acc = lambda t, c: ar(4*(5*t+c), 4)
    for i in range(80): k(f'v_accvgpr_write_b32 a{i}, 0')
    def step(s, pre, wait):
        k(f's_waitcnt vmcnt({wait})')
        j = 0
        for c in range(5):
            for t in range(4):
                k(f'v_mfma_f32_16x16x32_bf16 {acc(t,c)}, {vr(fa(s,c),4)}, {vr(fb(s,t),4)}, {acc(t,c)}')
                if j % 2 == 0 and pre: k(pre.pop(0))
                j += 1
        assert not pre
    k('s_waitcnt vmcnt(36)') if K.prof else None
    k.stamp(1)
    k(f's_mov_b32 s{sIT}, 5')
    loop = k.label('loop')
    k(f'{loop}:')
    for s in range(D):
        if s == 1:
            k(f's_add_u32 s{sKS}, s{sKS}, {D*1024}')
            k(f's_add_u32 s{sKS2}, s{sKS2}, {D*1024}')
        step(s, loads((s - 1) % D), 36)
    k(f's_sub_u32 s{sIT}, s{sIT}, 1')
    k(f's_cmp_lg_u32 s{sIT}, 0')
    k(f's_cbranch_scc1 {loop}')
    k.stamp(2)
    vTok, vQ, vHo, vMU, vOo = 16, 17, 18, 19, 20
    k(f'v_lshrrev_b32 v{vTok}, 2, v0')
    k(f'v_and_b32 v{vQ}, 3, v0')
    k(f'v_lshrrev_b32 v{vHo}, 5, v{vTok}')
    k(f'v_mul_u32_u24 v{vHo}, {36*1024}, v{vHo}')
    k(f'v_and_b32 v{T}, 31, v{vTok}')
    k(f'v_lshl_add_u32 v{vHo}, v{T}, 4, v{vHo}')
    k(f'v_lshl_add_u32 v{vHo}, v{vQ}, 9, v{vHo}')
    k(f's_mul_i32 s{sT0}, s{sTB}, {72*1024}')
    k(f's_lshl_b32 s{sT1}, s{sCT0}, 10')
    k(f's_add_u32 s{sT0}, s{sT0}, s{sT1}')
    k(f's_add_u32 s{sT0}, s{sT0}, {HB:#x}')
    k(f's_add_u32 s{sT1}, s{sT0}, 4096')
    k(f'v_lshlrev_b32 v21, 2, v{vTok}')
    hl = [f'buffer_load_dwordx4 {vr(HR,4)}, v{vHo}, {ws}, s{sT0} offen',
          f'buffer_load_dwordx4 {vr(HR+4,4)}, v{vHo}, {ws}, s{sT0} offen offset:2048',
          f'buffer_load_dwordx4 {vr(HR+8,4)}, v{vHo}, {ws}, s{sT1} offen']
    step(0, loads(D - 1), 36)
    for l in hl: k(l)
    k(f's_lshl_b32 s{sT1}, s{sTB}, 8')
    k(f's_add_u32 s{sT1}, s{sT1}, {MU:#x}')
    k(f'buffer_load_dword v{vMU}, v21, {ws}, s{sT1} offen')
    for s in range(1, D):
        step(s, [], 9*(D-1-s) + 4)
    k.stamp(3)
    write_partials(k, acc, vL, sWV, sT0, T)
    vRA = T + 3
    k(f'v_mul_u32_u24 v{vRA}, {PITCH}, v{vTok}')
    k(f'v_lshl_add_u32 v{vRA}, v{vQ}, 5, v{vRA}')
    k(f'v_mul_u32_u24 v{vOo}, 1152, v{vTok}')
    k(f'v_lshl_add_u32 v{vOo}, v{vQ}, 4, v{vOo}')
    k(f's_mul_i32 s{sT0}, s{sTB}, {64*1152}')
    k(f's_lshl_b32 s{sT1}, s{sCT0}, 5')
    k(f's_add_u32 s{sT0}, s{sT0}, s{sT1}')
    k('s_waitcnt lgkmcnt(0)')
    k('s_barrier')
    k.stamp(4)
    R = [BUF, BUF+32, BUF+64]
    reduce_piece(k, 0, vRA, R[0])
    k('s_waitcnt vmcnt(0)')
    for i in range(3):
        k('s_waitcnt lgkmcnt(0)')
        if i < 2: reduce_piece(k, i+1, vRA, R[i+1])
        r = R[i]
        sum_piece(k, r)
        if i == 2:
            k(f'v_add_u32 v{T}, 8, v{vQ}')
            k(f'v_cmp_gt_u32 vcc, s{sNP}, v{T}')
            k('s_and_saveexec_b64 s[40:41], vcc')
        for j in range(4):
            k(f'v_lshlrev_b32 v{r+8+2*j}, 16, v{HR+4*i+j}')
            k(f'v_and_b32 v{r+9+2*j}, s{sMASK}, v{HR+4*i+j}')
        for j in range(8): k(f'v_add_f32 v{r+8+j}, v{r+8+j}, v{vMU}')
        for j in range(8): k(f'v_add_f32 v{r+j}, v{r+j}, v{r+8+j}')
        for j in range(4): k(f'v_cvt_pk_bf16_f32 v{r+16+j}, v{r+2*j}, v{r+2*j+1}')
        k(f'buffer_store_dwordx4 {vr(r+16,4)}, v{vOo}, {sr(OUT,4)}, s{sT0} offen offset:{64*i} sc1')
    k('s_waitcnt vmcnt(0)') if K.prof else None
    k.stamp(5); k.stamp(13, True); k.stamp_flush(ws, sWV)
    k(f'{done}:')
    k('s_endpgm')
    return k.finish(vgpr=252+80, accum=252), (256, 256, K5_LDS)
```

```python
from asmlib import *
from layout import *
from k1 import srd
import math, os

CH = 36 * 1024
K4_LDS = 4 * CH

def gen_k4():
    k = K('k4_gateup_kernel')
    WS = 12
    (sWV, sTB, sFS, sT0, sT1, sW, sM0, sHB, sHB2, sACT, sACT2, sIT, sRD, sF0, sF1, sF2, sFM, sPF) = range(24, 42)
    vL, vLO, vRD, vRN, vST, T = 1, 2, 3, 4, 5, 6
    C1, VV = 8, 10
    vR1, vR2 = 12, 13
    WF = 16
    E = 40
    HV = 72
    ACC = 104
    done = k.label('done')
    def hb(ks, tt):
        i = 2*ks + tt
        return ar(4*i, 4) if i < 64 else vr(HV + 4*(i-64), 4)
    k('s_cmp_ge_u32 s2, 256')
    k(f's_cbranch_scc1 {done}')
    k.kidx = 3; k.stamp(0); k.stamp(12, True)
    k('s_load_dwordx2 s[4:5], s[0:1], 72')
    k(f'v_lshrrev_b32 v{T}, 6, v0')
    k(f'v_and_b32 v{vL}, 63, v0')
    k(f'v_readfirstlane_b32 s{sWV}, v{T}')
    k(f's_and_b32 s{sTB}, s2, 4')
    k(f's_bfe_u32 s{sT0}, s2, 0x20003')
    k(f's_add_u32 s{sTB}, s{sTB}, s{sT0}')
    k(f's_and_b32 s{sFS}, s2, 3')
    k(f's_lshl_b32 s{sFS}, s{sFS}, 3')
    k(f's_lshr_b32 s{sT0}, s2, 5')
    k(f's_add_u32 s{sFS}, s{sFS}, s{sT0}')
    k(f'v_lshlrev_b32 v{vLO}, 4, v{vL}')
    k(f's_mul_i32 s{sW}, s{sFS}, {9*CH}')
    k(f's_add_u32 s{sW}, s{sW}, {WGU:#x}')
    k(f's_lshl_b32 s{sFM}, s{sWV}, 10')
    k(f's_add_u32 s{sF0}, s{sW}, s{sFM}')
    k(f's_add_u32 s{sF1}, s{sF0}, {CH}')
    k(f's_add_u32 s{sF2}, s{sF0}, {2*CH}')
    k(f's_mul_i32 s{sM0}, s{sWV}, {9*1024}')
    k(f's_add_u32 s{sW}, s{sW}, s{sM0}')
    k(f's_add_u32 s{sW}, s{sW}, {3*CH}')
    k(f's_add_u32 s{sM0}, s{sM0}, {3*CH}')
    k(f's_lshl_b32 s{sT0}, s{sTB}, 3')
    k(f's_lshl_b32 s{sT1}, s{sWV}, 1')
    k(f's_add_u32 s{sT0}, s{sT0}, s{sT1}')
    k(f's_mul_i32 s{sHB}, s{sT0}, {CH}')
    k(f's_add_u32 s{sHB}, s{sHB}, {HB:#x}')
    k(f's_add_u32 s{sHB2}, s{sHB}, {CH}')
    k(f's_mul_i32 s{sACT}, s{sT0}, {2*147456}')
    k(f's_mul_i32 s{sT1}, s{sFS}, {9*512}')
    k(f's_add_u32 s{sACT}, s{sACT}, s{sT1}')
    k(f's_add_u32 s{sACT}, s{sACT}, {ACT:#x}')
    k(f's_add_u32 s{sACT2}, s{sACT}, {2*147456}')
    k(f's_lshl_b32 s{sT0}, s{sT0}, 10')
    k(f's_add_u32 s{sT0}, s{sT0}, {SS:#x}')
    k(f'v_and_b32 v{T}, 31, v{vL}')
    k(f'v_lshlrev_b32 v{T}, 5, v{T}')
    k(f'v_lshrrev_b32 v{T+1}, 5, v{vL}')
    k(f'v_lshl_add_u32 v{T}, v{T+1}, 4, v{T}')
    PFSRC = os.environ.get('K4PF', 'wd')
    k(f's_mov_b32 s{sPF}, {OOB:#x}')
    k('s_waitcnt lgkmcnt(0)')
    k.stamp(7)
    srd(k, WS, 4, WS_END)
    ws = sr(WS, 4)
    def dma_list(last=False):
        out = []
        for i in range(9):
            pre = []
            if i % 4 == 0:
                pre.append(f's_add_u32 m0, s{sM0}, {1024*i}')
                pre.append(f's_add_u32 s{sT1}, s{sW}, {1024*i}')
            out.append(pre + [f'buffer_load_dwordx4 v{vLO}, {ws}, s{sT1} offen offset:{1024*(i%4)} lds'])
        out[-1] += [f's_add_u32 s{sW}, s{sW}, {CH}',
                    f's_add_u32 s{sM0}, s{sM0}, {CH}',
                    f's_cmp_ge_u32 s{sM0}, {4*CH}',
                    f's_cselect_b32 s{sT1}, {4*CH}, 0',
                    f's_sub_u32 s{sM0}, s{sM0}, s{sT1}']
        if last: out[-1] += [f's_mov_b32 s{sW}, s{sPF}']
        return out
    def stage_loads(s):
        out = []
        for c, sf in enumerate((sF0, sF1, sF2)):
            out.append([f's_add_u32 m0, s{sFM}, {c*CH + 4096*s}', f's_nop 0',
                        f'buffer_load_dwordx4 v{vLO}, {ws}, s{sf} offen lds', f's_add_u32 s{sf}, s{sf}, 4096'])
        for j in range(4):
            ks = 4*s + j
            out.append([f'buffer_load_dwordx4 {hb(ks,0)}, v{vLO}, {ws}, s{sHB} offen offset:{1024*j}'])
            out.append([f'buffer_load_dwordx4 {hb(ks,1)}, v{vLO}, {ws}, s{sHB2} offen offset:{1024*j}'])
        out[-1] += [f's_add_u32 s{sHB}, s{sHB}, 4096', f's_add_u32 s{sHB2}, s{sHB2}, 4096']
        return out
    def emit(groups):
        for g in groups:
            for l in g: k(l)
    LEAD = int(os.environ.get('K4LEAD', '2'))
    emit(stage_loads(0))
    for tt in range(2):
        k(f'buffer_load_dwordx4 {vr(E+4*tt,4)}, v{T}, {ws}, s{sT0} offen offset:{1024*tt}')
    for s in range(1, LEAD): emit(stage_loads(s))
    k(f'v_bfe_u32 v{vST}, v{vL}, 4, 1')
    k(f'v_mul_u32_u24 v{vST}, 147456, v{vST}')
    k(f'v_lshl_add_u32 v{vST}, v{T+1}, 8, v{vST}')
    k(f'v_and_b32 v{T+1}, 15, v{vL}')
    k(f'v_lshl_add_u32 v{vST}, v{T+1}, 4, v{vST}')
    k(f'v_add_u32 v{vR1}, {CH}, v{vLO}')
    k(f'v_add_u32 v{vR2}, {2*CH}, v{vLO}')
    k(f'v_add_u32 v{vRN}, {3*CH}, v{vLO}')
    k(f's_mov_b32 s{sRD}, 0')
    k(f's_waitcnt vmcnt({8 + 2 + 11*(LEAD-1)})')
    k('s_barrier')
    k.stamp(1)
    def frd(ks, c):
        return f'ds_read_b128 {vr(WF+4*(3*(ks&1)+c),4)}, v{(vLO,vR1,vR2)[c]} offset:{1024*ks}'
    PD = 3
    def rd(ks):
        if ks < 36: return f'ds_read_b128 {vr(WF+4*(ks%4),4)}, v{vRD} offset:{1024*ks}'
        return f'ds_read_b128 {vr(WF+4*(ks%4),4)}, v{vRN} offset:{1024*(ks-36)}'
    for c in range(3): k(frd(0, c))
    issued = []
    def tags(s): return [('d', s)]*3 + [('h', 4*s + j//2) for j in range(8)]
    issued += tags(0) + [('s', 0)]*2
    for s in range(1, LEAD): issued += tags(s)
    def younger(pred):
        idx = max(i for i, t in enumerate(issued) if pred(t))
        return len(issued) - 1 - idx
    for s in range(9):
        q = []; qt = []
        if s + LEAD < 9: q = stage_loads(s + LEAD); qt = tags(s + LEAD)
        elif s + LEAD == 9: q = dma_list(); qt = [('c3', 0)]*9
        slot = 0
        for j in range(4):
            ks = 4*s + j
            n = younger(lambda t: t == ('h', ks))
            if j == 3 and s < 8:
                n = min(n, younger(lambda t: t == ('d', s + 1)))
                k(f's_waitcnt vmcnt({n}) lgkmcnt(0)')
                k('s_barrier')
            elif j == 3:
                k(f's_waitcnt vmcnt(0) lgkmcnt(0)')
                k('s_barrier')
            else:
                k(f's_waitcnt vmcnt({n}) lgkmcnt(0)')
            for c in range(3):
                for tt in range(2):
                    a = ACC + 32*c + 16*tt
                    k(f'v_mfma_f32_32x32x16_bf16 {vr(a,16)}, {vr(WF+4*(3*(ks&1)+c),4)}, {hb(ks,tt)}, {vr(a,16) if ks else 0}')
                    if tt == 0:
                        if ks < 35: k(frd(ks + 1, c))
                        else: k(rd(36 + c))
                    elif q and slot < len(q):
                        for l in q[slot]: k(l)
                        issued.append(qt[slot]); slot += 1
            if ks == 5:
                for tt in range(2):
                    e = E + 4*tt
                    k(f'v_add_f32 v{e}, v{e}, v{e+1}')
                    k(f'v_add_f32 v{e+2}, v{e+2}, v{e+3}')
                    k(f'v_add_f32 v{e}, v{e}, v{e+2}')
                    k(f'v_mov_b32 v{e+1}, v{e}')
                    k(f'v_mov_b32 v{VV+tt}, {f32bits(1e-5):#x}')
                    k(f'v_permlane32_swap_b32 v{e}, v{e+1}')
                    k(f'v_add_f32 v{e}, v{e}, v{e+1}')
                    k(f'v_fmac_f32 v{VV+tt}, {f32bits(1/576):#x}, v{e}')
                    k(f'v_rsq_f32 v{C1+tt}, v{VV+tt}')
                    k(f'v_mul_f32 v{C1+tt}, {f32bits(-math.log2(math.e)):#x}, v{C1+tt}')
        assert slot == len(q)
    def nextaddr():
        k(f'v_mov_b32 v{vRD}, v{vRN}')
        k(f'v_add_u32 v{vRN}, s{sRD}, v{vLO}')
        k(f's_add_u32 s{sRD}, s{sRD}, {CH}')
        k(f's_cmp_ge_u32 s{sRD}, {4*CH}')
        k(f's_cselect_b32 s{sRD}, 0, s{sRD}')
    nextaddr()
    k.stamp(2)
    def epi_ops(a):
        ops = []
        for tt in range(2):
            g = a + 16*tt; u = g + 8; e = E + 16*tt
            for hf in range(2):
                r = range(4*hf, 4*hf+4)
                ops += [f'v_mul_f32 v{e+i}, v{C1+tt}, v{g+i}' for i in r]
                ops += [f'v_exp_f32 v{e+i}, v{e+i}' for i in r]
                ops += [f'v_mul_f32 v{e+8+i}, v{g+i}, v{u+i}' for i in r]
                ops += [f'v_fma_f32 v{e+i}, v{e+i}, v{VV+tt}, v{VV+tt}' for i in r]
                ops += [f'v_rcp_f32 v{e+i}, v{e+i}' for i in r]
                ops += [f'v_mul_f32 v{e+8+i}, v{e+8+i}, v{e+i}' for i in r]
            ops += [f'v_cvt_pk_bf16_f32 v{e+i}, v{e+8+2*i}, v{e+9+2*i}' for i in range(4)]
            ops += [f'buffer_store_dwordx4 {vr(e,4)}, v{vST}, {ws}, s{sACT2 if tt else sACT} offen sc1']
        ops += [f's_add_u32 s{sACT}, s{sACT}, 512', f's_add_u32 s{sACT2}, s{sACT2}, 512']
        return ops
    def cost(l):
        if l.startswith('v_exp') or l.startswith('v_rcp'): return 8
        if l.startswith('buffer'): return 16
        if l.startswith('s_'): return 2
        return 4
    def body(cur, prevs, dmas, vmwait):
        a = ACC + 32*cur
        ep = []
        for p in prevs: ep += epi_ops(ACC + 32*p)
        X = os.environ.get('K4X', '')
        if 'noepi' in X: ep = [l for l in ep if not l.startswith('v_')]
        if 'nost' in X: ep = [l for l in ep if not l.startswith('buffer')]
        if 'nodma' in X and len(prevs) == 1: dmas = {}
        total = sum(cost(l) for l in ep)
        nslots = 66
        budget = total / nslots
        acc = 0.0; slot = 0
        vm = []
        for ks in range(36):
            if ks == 33:
                k(f's_waitcnt vmcnt({vmwait(vm)})')
                if 'nobar' not in X: k('s_barrier')
            k(rd(ks + PD))
            k(f's_waitcnt lgkmcnt({PD})')
            for tt in range(2):
                c = vr(a+16*tt,16) if ks else '0'
                k(f'v_mfma_f32_32x32x16_bf16 {vr(a+16*tt,16)}, {vr(WF+4*(ks%4),4)}, {hb(ks,tt)}, {c}')
                if tt == 0 and ks in dmas:
                    tag, g = dmas[ks]
                    for l in g: k(l)
                    vm.append(tag)
                elif slot >= 3:
                    acc += budget * (72 / 60)
                    while ep and acc >= cost(ep[0]) * 0.75:
                        l = ep.pop(0); acc -= cost(l); k(l)
                        if l.startswith('buffer'): vm.append('st')
                slot += 1
        for l in ep: k(l)
        nextaddr()
    d = {}
    for i, g in enumerate(dma_list()): d[1 + i] = ('a', g)
    for i, g in enumerate(dma_list()): d[12 + 2*i] = ('b', g)
    body(3, [0, 1], d, lambda vm: len(vm) - 1 - max(i for i, t in enumerate(vm) if t == 'a'))
    def std(last=False): return {2 + 3*i: ('a', g) for i, g in enumerate(dma_list(last))}
    body(0, [2, 3], std(), lambda vm: len(vm))
    k.stamp(3)
    k(f's_mov_b32 s{sIT}, 2')
    loop = k.label('loop')
    k(f'{loop}:')
    body(1, [0], std(), lambda vm: len(vm))
    body(0, [1], std(True), lambda vm: len(vm))
    k(f's_sub_u32 s{sIT}, s{sIT}, 1')
    k(f's_cmp_lg_u32 s{sIT}, 0')
    k(f's_cbranch_scc1 {loop}')
    k.stamp(4)
    for l in epi_ops(ACC): k(l)
    k('s_waitcnt vmcnt(0)') if K.prof else None
    k.stamp(5); k.stamp(13, True); k.stamp_flush(ws, sWV)
    k(f'{done}:')
    k('s_endpgm')
    return k.finish(vgpr=232+256, accum=232), (256, 256, K4_LDS)
```

```python
from asmlib import *
from layout import *
from k1 import srd
import os

CH = 36 * 1024
TP = 592
K5_LDS = 3 * CH + 4 * 8 * TP
MSG = 2304

def gen_k5():
    k = K('k5_down_kernel')
    WS, OUT = 12, 16
    (sWV, sS, sTB, sCB, sT0, sT1, sT2, sW, sM0, sA0, sA1, sIT, sQD, sMASK, sH, sO) = range(24, 40)
    vL, vLO, vAO, vR0, vR1, vR2, T = 1, 2, 3, 4, 5, 6, 8
    vHo, vOo, vMo, vTW, vTR = 16, 19, 22, 25, 26
    HR = 32
    MUr = 44
    WF = 48
    ACC = 120
    RX = 192
    done = k.label('done')
    act = lambda ks, t: ar(8*(ks % 12) + 4*t, 4)
    acc = lambda t, c: ACC + 4*(9*t + c)
    wf = lambda ks, c: vr(WF + 36*(ks & 1) + 4*c, 4)
    k('s_cmp_ge_u32 s2, 256')
    k(f's_cbranch_scc1 {done}')
    k.kidx = 4; k.stamp(0); k.stamp(12, True)
    k('s_load_dwordx2 s[4:5], s[0:1], 72')
    k('s_load_dwordx2 s[6:7], s[0:1], 56')
    k(f'v_lshrrev_b32 v{T}, 6, v0')
    k(f'v_and_b32 v{vL}, 63, v0')
    k(f'v_readfirstlane_b32 s{sWV}, v{T}')
    k(f's_and_b32 s{sS}, s2, 3')
    k(f's_and_b32 s{sTB}, s2, 4')
    k(f's_lshl_b32 s{sTB}, s{sTB}, 1')
    k(f's_bfe_u32 s{sT0}, s2, 0x30003')
    k(f's_add_u32 s{sTB}, s{sTB}, s{sT0}')
    k(f's_lshr_b32 s{sCB}, s2, 6')
    k(f's_lshl_b32 s{sQD}, s{sTB}, 2')
    k(f's_add_u32 s{sQD}, s{sQD}, s{sCB}')
    k(f'v_lshlrev_b32 v{vLO}, 4, v{vL}')
    k(f'v_add_u32 v{T}, s{sS}, v{vL}')
    k(f'v_and_b32 v{T}, 3, v{T}')
    k(f'v_and_b32 v{T+1}, 60, v{vL}')
    k(f'v_or_b32 v{T}, v{T}, v{T+1}')
    k(f'v_lshlrev_b32 v{vAO}, 4, v{T}')
    k(f's_lshl_b32 s{sT0}, s{sTB}, 3')
    k(f's_lshl_b32 s{sT1}, s{sWV}, 1')
    k(f's_add_u32 s{sT0}, s{sT0}, s{sT1}')
    k(f's_mul_i32 s{sA0}, s{sT0}, {144*1024}')
    k(f's_mul_i32 s{sT1}, s{sS}, {36*1024}')
    k(f's_add_u32 s{sA0}, s{sA0}, s{sT1}')
    k(f's_add_u32 s{sA0}, s{sA0}, {ACT:#x}')
    k(f's_add_u32 s{sA1}, s{sA0}, {144*1024}')
    k(f's_lshl_b32 s{sT0}, s{sCB}, 2')
    k(f's_add_u32 s{sT0}, s{sT0}, s{sS}')
    k(f's_mul_i32 s{sW}, s{sT0}, {9*CH}')
    k(f's_mul_i32 s{sM0}, s{sWV}, {9*1024}')
    k(f's_add_u32 s{sW}, s{sW}, s{sM0}')
    k(f's_add_u32 s{sW}, s{sW}, {WD:#x}')
    k('s_waitcnt lgkmcnt(0)')
    k.stamp(7)
    srd(k, WS, 4, WS_END)
    ws = sr(WS, 4)
    def dma(st, i):
        out = []
        if i % 4 == 0:
            out.append(f's_add_u32 m0, s{sM0}, {(st % 3)*CH + 1024*i}')
            out.append(f's_add_u32 s{sT1}, s{sW}, {1024*i}')
        out.append(f'buffer_load_dwordx4 v{vLO}, {ws}, s{sT1} offen offset:{1024*(i%4)} lds')
        if i == 8: out.append(f's_add_u32 s{sW}, s{sW}, {CH}')
        return out
    def aload(ks, t):
        out = [f'buffer_load_dwordx4 {act(ks,t)}, v{vAO}, {ws}, s{sA1 if t else sA0} offen offset:{1024*(ks%4)}']
        if ks % 4 == 3: out.append(f's_add_u32 s{sA1 if t else sA0}, s{sA1 if t else sA0}, 4096')
        return out
    issued = []
    def iss(tag, ls):
        for l in ls: k(l)
        issued.append(tag)
    AL = int(os.environ.get('K5AL', '8'))
    for i in range(9): iss(('w', 0), dma(0, i))
    for ks in range(4):
        for t in range(2): iss(('a', ks), aload(ks, t))
    for i in range(9): iss(('w', 1), dma(1, i))
    for ks in range(4, AL):
        for t in range(2): iss(('a', ks), aload(ks, t))
    srd(k, OUT, 6, 2048*1152)
    k(f'v_mov_b32 v{vR0}, v{vLO}')
    k(f'v_add_u32 v{vR1}, {CH}, v{vLO}')
    k(f'v_add_u32 v{vR2}, {2*CH}, v{vLO}')
    for i in range(72): k(f'v_mov_b32 v{ACC+i}, 0')
    def younger(tag):
        return len(issued) - 1 - max(i for i, t in enumerate(issued) if t == tag)
    def rd(ks, c):
        st = ks // 4
        return f'ds_read_b128 {wf(ks,c)}, v{(vR0,vR1,vR2)[st % 3]} offset:{((ks % 4)*9 + c)*1024}'
    k(f's_waitcnt vmcnt({younger(("w",0))})')
    k('s_barrier')
    k.stamp(1)
    for c in range(9): k(rd(0, c))
    def kstep(ks, emit=True, extra=None):
        st, j = ks // 4, ks % 4
        out = []
        n = younger(('a', ks))
        bar = j == 3 and st < 8
        if bar: n = min(n, younger(('w', st + 1)))
        out.append(f's_waitcnt vmcnt({n}) lgkmcnt(0)')
        if bar: out.append('s_barrier')
        q = []
        if ks + AL < 36:
            for t in range(2): q.append((('a', ks + AL), aload(ks + AL, t)))
        if st + 2 < 9 and j < 3:
            for i in range(3*j, 3*j + 3): q.insert(2*(i - 3*j) if 2*(i-3*j) <= len(q) else len(q), (('w', st + 2), dma(st + 2, i)))
        if extra: q += extra
        pos = {}
        if q:
            stepm = 18 // len(q)
            for i, e in enumerate(q): pos[[9, 11, 13, 15, 17][i] if len(q) > 3 else [9, 12, 15][i]] = e
        m = 0
        for c in range(9):
            for t in range(2):
                a = acc(t, c)
                out.append(f'v_mfma_f32_16x16x32_bf16 {vr(a,4)}, {act(ks,t)}, {wf(ks,c)}, {vr(a,4)}')
                if m < 9 and ks < 35: out.append(rd(ks + 1, m))
                if m in pos:
                    tag, ls = pos[m]; out += ls; issued.append(tag)
                m += 1
        return out
    it0 = []
    for ks in range(12): it0 += kstep(ks)
    it1 = []
    for ks in range(12, 24): it1 += kstep(ks)
    assert len(it0) == len(it1)
    body = []
    import re
    for a, b in zip(it0, it1):
        if a == b: body.append(a)
        else:
            ma, mb = re.match(r's_waitcnt vmcnt\((\d+)\)', a), re.match(r's_waitcnt vmcnt\((\d+)\)', b)
            assert ma and mb, (a, b)
            body.append(f's_waitcnt vmcnt({min(int(ma.group(1)), int(mb.group(1)))}) lgkmcnt(0)')
    k(f's_mov_b32 s{sIT}, 2')
    loop = k.label('loop')
    k(f'{loop}:')
    for l in body: k(l)
    k(f's_sub_u32 s{sIT}, s{sIT}, 1')
    k(f's_cmp_lg_u32 s{sIT}, 0')
    k(f's_cbranch_scc1 {loop}')
    k.stamp(2)
    k(f's_lshl_b32 s{sT0}, s{sTB}, 2')
    k(f's_add_u32 s{sT0}, s{sT0}, s{sWV}')
    k(f's_mul_i32 s{sH}, s{sT0}, {CH}')
    k(f's_mul_i32 s{sT1}, s{sCB}, {18*512}')
    k(f's_add_u32 s{sH}, s{sH}, s{sT1}')
    k(f's_lshl_b32 s{sT1}, s{sS}, 4')
    k(f's_add_u32 s{sH}, s{sH}, s{sT1}')
    k(f's_add_u32 s{sH}, s{sH}, {HB:#x}')
    k(f's_lshl_b32 s{sT0}, s{sT0}, 5')
    k(f's_add_u32 s{sT0}, s{sT0}, s{sS}')
    k(f's_mul_i32 s{sO}, s{sT0}, 1152')
    k(f's_mul_i32 s{sT1}, s{sCB}, 288')
    k(f's_add_u32 s{sO}, s{sO}, s{sT1}')
    k(f's_lshl_b32 s{sT2}, s{sT0}, 2')
    k(f's_add_u32 s{sT2}, s{sT2}, {MU:#x}')
    k(f's_mul_i32 s{sT0}, s{sWV}, {8*TP}')
    k(f's_add_u32 s{sT0}, s{sT0}, {3*CH}')
    for r in range(3):
        k(f'v_add_u32 v{T}, {64*r}, v{vL}')
        if r == 2: k(f'v_min_u32 v{T}, 143, v{T}')
        k(f'v_mul_u32_u24 v{T+1}, 3641, v{T}')
        k(f'v_lshrrev_b32 v{T+1}, 16, v{T+1}')
        k(f'v_mul_u32_u24 v{T+2}, 18, v{T+1}')
        k(f'v_sub_u32 v{T+2}, v{T}, v{T+2}')
        k(f'v_lshlrev_b32 v{vMo+r}, 4, v{T+1}')
        k(f'v_lshlrev_b32 v{T+3}, 6, v{T+1}')
        k(f'v_lshl_add_u32 v{vHo+r}, v{T+2}, 9, v{T+3}')
        k(f'v_mul_u32_u24 v{T+3}, {4*1152}, v{T+1}')
        k(f'v_lshl_add_u32 v{vOo+r}, v{T+2}, 4, v{T+3}')
        k(f'v_mul_u32_u24 v{T+3}, {TP}, v{T+1}')
        k(f'v_lshl_add_u32 v{T+3}, v{T+2}, 5, v{T+3}')
        k(f'v_add_u32 v{vTR+r}, s{sT0}, v{T+3}')
    k(f'v_lshrrev_b32 v{T}, 4, v{vL}')
    k(f'v_mul_u32_u24 v{T}, {TP}, v{T}')
    k(f'v_and_b32 v{T+1}, 15, v{vL}')
    k(f'v_lshl_add_u32 v{T}, v{T+1}, 2, v{T}')
    k(f'v_add_u32 v{vTW}, s{sT0}, v{T}')
    k(f's_mov_b32 s{sMASK}, 0xffff0000')
    ex = []
    for r in range(3):
        ex.append((('h', r), [f'buffer_load_dwordx4 {vr(HR+4*r,4)}, v{vHo+r}, {ws}, s{sH} offen']))
        ex.append((('h', r), [f'buffer_load_dword v{MUr+r}, v{vMo+r}, {ws}, s{sT2} offen']))
    for ks in range(24, 36):
        for l in kstep(ks, extra=(ex[3*(ks-30):3*(ks-30)+3] if ks in (30, 31) else None)): k(l)
    k.stamp(3)
    k(f'v_lshlrev_b32 v{T}, 2, v{vL}')
    for i in range(1, 4):
        b = WF + 12*(i-1)
        for c in range(9): k(f'v_cvt_pk_bf16_f32 v{b+c}, v{acc(0,c)+i}, v{acc(1,c)+i}')
        k(f's_add_u32 s{sT0}, s{sS}, {i}')
        k(f's_and_b32 s{sT0}, s{sT0}, 3')
        k(f's_lshl_b32 s{sT1}, s{sQD}, 2')
        k(f's_add_u32 s{sT0}, s{sT0}, s{sT1}')
        k(f's_lshl_b32 s{40+i}, s{sT0}, 6')
        k(f's_add_u32 s{40+i}, s{40+i}, {FLG + 4*(i-1):#x}')
        k(f's_mul_i32 s{sT0}, s{sT0}, 12')
        k(f's_add_u32 s{sT0}, s{sT0}, s{sWV}')
        k(f's_mul_i32 s{sT0}, s{sT0}, {MSG}')
        k(f's_add_u32 s{sT0}, s{sT0}, {EXC + (i-1)*4*MSG:#x}')
        k(f'buffer_store_dwordx4 {vr(b,4)}, v{vLO}, {ws}, s{sT0} offen sc1')
        k(f'buffer_store_dwordx4 {vr(b+4,4)}, v{vLO}, {ws}, s{sT0} offen offset:1024 sc1')
        k(f'buffer_store_dword v{b+8}, v{T}, {ws}, s{sT0} offen offset:2048 sc1')
    k(f's_lshl_b32 s{sT1}, s{sQD}, 2')
    k(f's_add_u32 s{sT1}, s{sT1}, s{sS}')
    k(f's_lshl_b32 s{sT2}, s{sT1}, 6')
    k(f's_add_u32 s{sT2}, s{sT2}, {FLG:#x}')
    k(f's_mul_i32 s{sT1}, s{sT1}, 12')
    k(f's_add_u32 s{sT1}, s{sT1}, s{sWV}')
    k(f's_mul_i32 s{sT1}, s{sT1}, {MSG}')
    k(f's_add_u32 s{sT1}, s{sT1}, {EXC:#x}')
    k(f'v_mov_b32 v{T+1}, 0')
    k(f'v_mov_b32 v{T+2}, 1')
    k('s_waitcnt vmcnt(0)')
    k('s_barrier')
    k.stamp(4)
    nosig = k.label('nosig'); poll = k.label('poll')
    k(f's_cmp_lg_u32 s{sWV}, 0')
    k(f's_cbranch_scc1 {nosig}')
    k('s_mov_b64 exec, 1')
    for i in range(1, 4): k(f'buffer_store_dword v{T+2}, v{T+1}, {ws}, s{40+i} offen sc1')
    k('s_mov_b64 exec, -1')
    k(f'{nosig}:')
    pdone = k.label('pdone')
    k(f's_mov_b32 s{sIT}, 0x40000')
    k(f'{poll}:')
    k(f's_sub_u32 s{sIT}, s{sIT}, 1')
    k(f's_cbranch_scc1 {pdone}')
    k(f'buffer_load_dwordx3 {vr(T+4,3)}, v{T+1}, {ws}, s{sT2} offen sc1')
    k('s_waitcnt vmcnt(0)')
    k(f'v_and_b32 v{T+4}, v{T+4}, v{T+5}')
    k(f'v_and_b32 v{T+4}, v{T+4}, v{T+6}')
    k(f'v_readfirstlane_b32 s{sT0}, v{T+4}')
    k(f's_cmp_eq_u32 s{sT0}, 1')
    k(f's_cbranch_scc0 {poll}')
    k(f'{pdone}:')
    k.stamp(5)
    for i in range(3):
        b = RX + 12*i
        k(f'buffer_load_dwordx4 {vr(b,4)}, v{vLO}, {ws}, s{sT1} offen sc1')
        k(f'buffer_load_dwordx4 {vr(b+4,4)}, v{vLO}, {ws}, s{sT1} offen offset:1024 sc1')
        k(f'buffer_load_dword v{b+8}, v{T}, {ws}, s{sT1} offen offset:2048 sc1')
        k(f's_add_u32 s{sT1}, s{sT1}, {4*MSG}')
    for i in range(3):
        b = RX + 12*i
        k(f's_waitcnt vmcnt({3*(2-i)})')
        for c in range(9):
            k(f'v_lshlrev_b32 v{acc(0,c)+1}, 16, v{b+c}')
            k(f'v_and_b32 v{acc(1,c)+1}, s{sMASK}, v{b+c}')
            k(f'v_add_f32 v{acc(0,c)}, v{acc(0,c)}, v{acc(0,c)+1}')
            k(f'v_add_f32 v{acc(1,c)}, v{acc(1,c)}, v{acc(1,c)+1}')
            if i == 2:
                for t in range(2): k(f'ds_write_b32 v{vTW}, v{acc(t,c)} offset:{4*t*TP + 64*c}')
    k('s_waitcnt lgkmcnt(0)')
    for r in range(3):
        k(f'ds_read_b128 {vr(WF+16*r,4)}, v{vTR+r}')
        k(f'ds_read_b128 {vr(WF+16*r+4,4)}, v{vTR+r} offset:16')
    for r in range(3):
        b = WF + 16*r
        for j in range(4):
            k(f'v_lshlrev_b32 v{b+8+2*j}, 16, v{HR+4*r+j}')
            k(f'v_and_b32 v{b+9+2*j}, s{sMASK}, v{HR+4*r+j}')
        for j in range(8): k(f'v_add_f32 v{b+8+j}, v{b+8+j}, v{MUr+r}')
        k(f's_waitcnt lgkmcnt({2*(2-r)})')
        for j in range(8): k(f'v_add_f32 v{b+j}, v{b+j}, v{b+8+j}')
        for j in range(4): k(f'v_cvt_pk_bf16_f32 v{b+8+j}, v{b+2*j}, v{b+2*j+1}')
        if r == 2: k('s_mov_b64 exec, 0xffff')
        k(f'buffer_store_dwordx4 {vr(b+8,4)}, v{vOo+r}, {sr(OUT,4)}, s{sO} offen')
    k('s_waitcnt vmcnt(0)') if K.prof else None
    k.stamp(6); k.stamp(13, True); k.stamp_flush(ws, sWV)
    k(f'{done}:')
    k('s_endpgm')
    return k.finish(vgpr=228+96, accum=228), (256, 256, K5_LDS)
```

```python
QI  = 0x0
KI  = 0x240000
VT  = 0x480000
VP  = 9344
OI  = 0x740000
HB  = 0x980000
MUX = 0xBC0000
MU  = 0xBC2000
SS  = 0xBC4000
RM  = 0xBD4000
FLG = 0xBE0000
WOP = 0xC00000
WGU = 0xD00000
WD  = 0x1800000
ACT = 0x1E00000
PROF = 0x3000000
EXC = 0x3200000
WS_END = 0x3C00000
OOB = 0x7F000000
WOP_T = 20*1024
```

```python
from asmlib import *
from layout import *
import math

def srd(k, d, ptr, size):
    k(f's_mov_b32 s{d}, s{ptr}')
    k(f's_and_b32 s{d+1}, s{ptr+1}, 0xffff')
    k(f's_mov_b32 s{d+2}, {size:#x}')
    k(f's_mov_b32 s{d+3}, 0x00020000')

XN_TT = 72 * 544
XN_SZ = 2 * XN_TT
RING = 9 * 2048
K1_LDS = XN_SZ + 4 * RING

def gen_k1():
    k = K('k1_qkv_kernel')
    X, W, WS, WO = 12, 16, 20, 24
    sTB, sCG, sWV, sPR, sONE, sMASK, sT0, sT1, sWOFF, sRB, sCNT, sSC, sREG, sT2 = 28, 29, 30, 31, 32, 33, 34, 35, 36, 37, 38, 39, 40, 41
    vL, vXO, vWO, vXW, vXR, vWR = 1, 2, 3, 4, 5, 6
    XD = 16
    ACC = 96
    WF = 160
    XF = 176
    EO = 192
    T = 200
    done = k.label('done'); side = k.label('side')
    k(f's_cmp_ge_u32 s2, 256')
    k(f's_cbranch_scc1 {done}')
    k.kidx = 0; k.stamp(0); k.stamp(12, True)
    k('s_load_dwordx4 s[4:7], s[0:1], 0')
    k('s_load_dwordx2 s[8:9], s[0:1], 16')
    k('s_load_dwordx2 s[10:11], s[0:1], 72')
    k(f'v_lshrrev_b32 v{T}, 6, v0')
    k(f'v_and_b32 v{vL}, 63, v0')
    k(f'v_readfirstlane_b32 s{sWV}, v{T}')
    k(f's_and_b32 s{sT0}, s2, 7')
    k(f's_lshr_b32 s{sT1}, s2, 3')
    k(f's_lshr_b32 s{sCG}, s{sT1}, 2')
    k(f's_and_b32 s{sT1}, s{sT1}, 3')
    k(f's_lshl_b32 s{sTB}, s{sT0}, 2')
    k(f's_add_u32 s{sTB}, s{sTB}, s{sT1}')
    k(f's_mov_b32 s{sONE}, 0x3f803f80')
    k(f's_mov_b32 s{sMASK}, 0xffff0000')
    k('s_waitcnt lgkmcnt(0)')
    k.stamp(7)
    srd(k, X, 4, 2048 * 1152)
    srd(k, W, 6, 576 * 3456)
    srd(k, WS, 10, WS_END)
    srd(k, WO, 8, 576 * 1152)
    k(f's_cmp_eq_u32 s{sCG}, 7')
    k(f's_cbranch_scc1 {side}')
    k(f's_lshl_b32 s{sPR}, s{sCG}, 2')
    k(f's_add_u32 s{sPR}, s{sPR}, s{sWV}')
    k(f's_lshl_b32 s{sT0}, s{sTB}, 6')
    k(f's_lshl_b32 s{sT1}, s{sWV}, 4')
    k(f's_add_u32 s{sT0}, s{sT0}, s{sT1}')
    k(f's_mul_i32 s{sT2}, s{sT0}, 1152')
    k(f'v_lshrrev_b32 v{T}, 2, v{vL}')
    k(f'v_mul_u32_u24 v{vXO}, 1152, v{T}')
    k(f'v_and_b32 v{T+1}, 3, v{vL}')
    k(f'v_lshl_add_u32 v{vXO}, v{T+1}, 4, v{vXO}')
    for i in range(18):
        k(f'buffer_load_dwordx4 {vr(XD+4*i,4)}, v{vXO}, {sr(X,4)}, s{sT2} offen offset:{64*i}')
    k(f'v_lshrrev_b32 v{T+2}, 5, v{vL}')
    k(f'v_lshlrev_b32 v{T+2}, 2, v{T+2}')
    k(f'v_bfe_u32 v{T+3}, v{vL}, 2, 2')
    k(f'v_add_u32 v{T+2}, v{T+2}, v{T+3}')
    k(f'v_mul_u32_u24 v{vWO}, 3456, v{T+2}')
    k(f'v_bfe_u32 v{T+3}, v{vL}, 4, 1')
    k(f'v_lshl_add_u32 v{vWO}, v{T+3}, 6, v{vWO}')
    k(f'v_lshl_add_u32 v{vWO}, v{T+1}, 4, v{vWO}')
    k(f's_lshl_b32 s{sWOFF}, s{sPR}, 7')
    k(f's_cmp_eq_u32 s{sPR}, 27')
    k(f's_cselect_b32 s{sWOFF}, {OOB:#x}, s{sWOFF}')
    k(f's_sub_u32 s{sWOFF}, s{sWOFF}, {8*3456}')
    k(f's_mul_i32 s{sRB}, s{sWV}, {RING}')
    k(f's_add_u32 s{sRB}, s{sRB}, {XN_SZ}')
    def dma(slot_instr):
        k(f's_add_u32 m0, s{sRB}, {slot_instr*1024}')
        k(f's_add_u32 s{sWOFF}, s{sWOFF}, {8*3456}')
        k(f'buffer_load_dwordx4 v{vWO}, {sr(W,4)}, s{sWOFF} offen lds')
    for i in range(18): dma(i)
    k(f's_lshr_b32 s{sT1}, s{sWV}, 1')
    k(f's_mul_i32 s{sT1}, s{sT1}, {XN_TT}')
    k(f's_and_b32 s{sT2}, s{sWV}, 1')
    k(f's_lshl_b32 s{sT2}, s{sT2}, 8')
    k(f's_add_u32 s{sT1}, s{sT1}, s{sT2}')
    k(f'v_mul_u32_u24 v{vXW}, 544, v{T+1}')
    k(f'v_lshl_add_u32 v{vXW}, v{T}, 4, v{vXW}')
    k(f'v_add_u32 v{vXW}, s{sT1}, v{vXW}')
    k(f'v_lshrrev_b32 v{T+4}, 5, v{vL}')
    k(f'v_and_b32 v{T+5}, 31, v{vL}')
    k(f'v_mul_u32_u24 v{vXR}, 544, v{T+4}')
    k(f'v_lshl_add_u32 v{vXR}, v{T+5}, 4, v{vXR}')
    k(f'v_lshlrev_b32 v{vWR}, 10, v{T+4}')
    k(f'v_bfe_u32 v{T+6}, v{vL}, 2, 2')
    k(f'v_lshl_add_u32 v{vWR}, v{T+6}, 6, v{vWR}')
    k(f'v_lshl_add_u32 v{vWR}, v{T+3}, 5, v{vWR}')
    k(f'v_lshl_add_u32 v{vWR}, v{T+1}, 3, v{vWR}')
    k(f'v_add_u32 v{vWR}, s{sRB}, v{vWR}')
    k(f's_mul_i32 s{sREG}, s{sPR}, 57')
    k(f's_lshr_b32 s{sREG}, s{sREG}, 9')
    k(f's_mul_i32 s{sT1}, s{sREG}, 9')
    k(f's_sub_u32 s{sT1}, s{sPR}, s{sT1}')
    isv = k.label('isv'); addr_done = k.label('addrdone')
    k(f's_cmp_ge_u32 s{sREG}, 2')
    k(f's_cbranch_scc1 {isv}')
    k(f's_lshl_b32 s{sT1}, s{sT1}, 4')
    k(f'v_add_u32 v{T+6}, s{sT1}, v{T+4}')
    for e in range(8):
        G, P, R, A, B = T+7, T+8, T+9, T+10, T+11
        k(f'v_add_u32 v{G}, {2*e}, v{T+6}')
        k(f'v_mul_u32_u24 v{P}, 57, v{G}')
        k(f'v_lshrrev_b32 v{P}, 9, v{P}')
        k(f'v_mul_u32_u24 v{R}, 9, v{P}')
        k(f'v_sub_u32 v{R}, v{G}, v{R}')
        k(f'v_cmp_lt_u32 vcc, 4, v{R}')
        k(f'v_cndmask_b32 v{A}, 0, 1, vcc')
        k(f'v_sub_u32 v{A}, v{R}, v{A}')
        k(f'v_lshrrev_b32 v{B}, 1, v{A}')
        k(f'v_lshl_add_u32 v{B}, v{P}, 2, v{B}')
        k(f'v_lshlrev_b32 v{B}, 15, v{B}')
        k(f'v_and_b32 v{A}, 1, v{A}')
        k(f'v_lshl_add_u32 v{B}, v{A}, 3, v{B}')
        k(f'v_add_u32 v{P}, 64, v{P}')
        k(f'v_lshlrev_b32 v{P}, 15, v{P}')
        k(f'v_cmp_eq_u32 vcc, 4, v{R}')
        k(f'v_cndmask_b32 v{B}, v{B}, v{P}, vcc')
        k(f'v_lshl_add_u32 v{EO+e}, v{T+5}, 4, v{B}')
    k(f's_branch {addr_done}')
    k(f'{isv}:')
    k(f's_lshl_b32 s{sT1}, s{sT1}, 6')
    for ct in range(2):
        C, H, D = T+7, T+8, T+9
        k(f'v_add_u32 v{C}, s{sT1}, v{T+5}')
        if ct: k(f'v_add_u32 v{C}, 32, v{C}')
        k(f'v_mul_u32_u24 v{H}, 3641, v{C}')
        k(f'v_lshrrev_b32 v{H}, 16, v{H}')
        k(f'v_mul_u32_u24 v{D}, 18, v{H}')
        k(f'v_sub_u32 v{D}, v{C}, v{D}')
        k(f'v_mul_u32_u24 v{H}, 73728, v{H}')
        k(f'v_lshl_add_u32 v{H}, v{D}, 4, v{H}')
        k(f'v_mul_u32_u24 v{D}, 288, v{T+4}')
        k(f'v_add_u32 v{EO+ct}, v{H}, v{D}')
    for e in range(2, 8): k(f'v_mov_b32 v{EO+e}, 0')
    k(f'{addr_done}:')
    for i in range(64): k(f'v_mov_b32 v{ACC+i}, 0')
    for i in range(4): k(f'v_mov_b32 v{8+i}, 0')
    for i in range(18):
        if i % 6 == 0: k(f's_waitcnt vmcnt({18 + 18 - (i+6)})')
        for r in range(4):
            x = XD + 4*i + r
            k(f'v_dot2c_f32_bf16 v{8+(r&1)}, s{sONE}, v{x}')
            k(f'v_dot2c_f32_bf16 v{10+(r&1)}, v{x}, v{x}')
    k.stamp(1)
    k('v_add_f32 v8, v8, v9')
    k('v_add_f32 v10, v10, v11')
    for qp in ('[1,0,3,2]', '[2,3,0,1]'):
        k(f'v_add_f32_dpp v8, v8, v8 quad_perm:{qp} row_mask:0xf bank_mask:0xf')
        k(f'v_add_f32_dpp v10, v10, v10 quad_perm:{qp} row_mask:0xf bank_mask:0xf')
    k(f'v_mul_f32 v8, {f32bits(1/576):#x}, v8')
    k(f'v_mul_f32 v10, {f32bits(1/576):#x}, v10')
    k(f'v_fma_f32 v10, -v8, v8, v10')
    k(f'v_max_f32 v10, 0, v10')
    k(f'v_add_f32 v10, {f32bits(1e-5):#x}, v10')
    k('v_rsq_f32 v12, v10')
    k('v_mul_f32 v14, v8, v12')
    k('v_mov_b32 v13, v12')
    k('v_sub_f32 v14, 0, v14')
    k('v_mov_b32 v15, v14')
    nomean = k.label('nomean')
    k(f's_cmp_lg_u32 s{sCG}, 0')
    k(f's_cbranch_scc1 {nomean}')
    k(f's_lshl_b32 s{sT1}, s{sT0}, 2')
    k(f's_add_u32 s{sT1}, s{sT1}, {MUX:#x}')
    k(f'v_and_b32 v9, 60, v{vL}')
    k(f'buffer_store_dword v8, v9, {sr(WS,4)}, s{sT1} offen')
    k(f'{nomean}:')
    for i in range(18):
        for r in range(4):
            x = XD + 4*i + r; t = T + 2*r
            k(f'v_lshlrev_b32 v{t}, 16, v{x}')
            k(f'v_and_b32 v{t+1}, s{sMASK}, v{x}')
        for r in range(4):
            t = T + 2*r
            k(f'v_pk_fma_f32 {vr(t,2)}, {vr(t,2)}, v[12:13], v[14:15]')
        for r in range(4):
            x = XD + 4*i + r; t = T + 2*r
            k(f'v_cvt_pk_bf16_f32 v{x}, v{t}, v{t+1}')
        k(f'ds_write_b128 v{vXW}, {vr(XD+4*i,4)} offset:{i*2176}')
    k('s_waitcnt lgkmcnt(0)')
    k.stamp(2)
    k('s_barrier')
    k.stamp(3)
    k(f's_cmp_eq_u32 s{sPR}, 27')
    k(f's_cbranch_scc1 {done}')
    vloop = k.label('vpath')
    def reads(s, buf):
        for ct in range(2):
            for rd in range(2):
                k(f'ds_read_b64_tr_b16 {vr(WF+8*buf+4*ct+2*rd,2)}, v{vWR} offset:{(s%9)*2048 + (2*rd+ct)*256}')
        for tt in range(2):
            k(f'ds_read_b128 {vr(XF+8*buf+4*tt,4)}, v{vXR} offset:{s*1088 + tt*XN_TT}')
    def gemm(isV):
        k('s_waitcnt vmcnt(16)')
        reads(0, 0)
        k(f's_mov_b32 s{sCNT}, 2')
        loop = k.label('loop')
        k(f'{loop}:')
        for s in range(18):
            buf = s & 1
            k('s_waitcnt vmcnt(14) lgkmcnt(0)')
            reads(s + 1, buf ^ 1)
            j = 0
            for ct in range(2):
                for tt in range(2):
                    a = ACC + 16*(2*ct+tt); wf = vr(WF+8*buf+4*ct,4); xf = vr(XF+8*buf+4*tt,4)
                    if isV: k(f'v_mfma_f32_32x32x16_bf16 {vr(a,16)}, {xf}, {wf}, {vr(a,16)}')
                    else:   k(f'v_mfma_f32_32x32x16_bf16 {vr(a,16)}, {wf}, {xf}, {vr(a,16)}')
                    if j < 2: dma((s % 9)*2 + j)
                    j += 1
        k(f'v_add_u32 v{vXR}, {18*1088}, v{vXR}')
        k(f's_sub_u32 s{sCNT}, s{sCNT}, 1')
        k(f's_cmp_lg_u32 s{sCNT}, 0')
        k(f's_cbranch_scc1 {loop}')
        k('s_waitcnt lgkmcnt(0)')
        k.stamp(4)
    k(f's_cmp_ge_u32 s{sREG}, 2')
    k(f's_cbranch_scc1 {vloop}')
    gemm(False)
    cq = math.log2(math.e) / math.sqrt(18.0)
    k(f's_cmp_eq_u32 s{sREG}, 0')
    k(f's_cselect_b32 s{sSC}, {f32bits(cq):#x}, 1.0')
    k(f's_cselect_b32 s{sT1}, {QI:#x}, {KI:#x}') if QI else k(f's_cselect_b32 s{sT1}, 0, {KI:#x}')
    k(f's_lshl_b32 s{sT2}, s{sTB}, 10')
    k(f's_add_u32 s{sT1}, s{sT1}, s{sT2}')
    for ct in range(2):
        for tt in range(2):
            a = ACC + 16*(2*ct+tt)
            for i in range(16): k(f'v_mul_f32 v{a+i}, s{sSC}, v{a+i}')
            for g in range(4):
                k(f'v_cvt_pk_bf16_f32 v{a+4*g}, v{a+4*g}, v{a+4*g+1}')
                k(f'v_cvt_pk_bf16_f32 v{a+4*g+1}, v{a+4*g+2}, v{a+4*g+3}')
                k(f'buffer_store_dwordx2 {vr(a+4*g,2)}, v{EO+4*ct+g}, {sr(WS,4)}, s{sT1} offen offset:{512*tt}')
    k('s_waitcnt vmcnt(0)') if K.prof else None
    k.stamp(5); k.stamp(13, True); k.stamp_flush(sr(WS,4), sWV)
    k('s_endpgm')
    k(f'{vloop}:')
    gemm(True)
    k(f's_mul_i32 s{sT1}, s{sTB}, 2304')
    k(f's_add_u32 s{sT1}, s{sT1}, {VT:#x}')
    for ct in range(2):
        for tt in range(2):
            a = ACC + 16*(2*ct+tt)
            for t in range(2):
                for i in range(4):
                    k(f'v_cvt_pk_bf16_f32 v{a+8*t+i}, v{a+8*t+2*i}, v{a+8*t+2*i+1}')
                k(f'buffer_store_dwordx4 {vr(a+8*t,4)}, v{EO+ct}, {sr(WS,4)}, s{sT1} offen offset:{1152*tt+576*t}')
    k('s_waitcnt vmcnt(0)') if K.prof else None
    k.stamp(5); k.stamp(13, True); k.stamp_flush(sr(WS,4), sWV)
    k('s_endpgm')
    k(f'{side}:')
    k(f's_lshl_b32 s{sT0}, s{sTB}, 2')
    k(f's_add_u32 s{sT0}, s{sT0}, s{sWV}')
    k(f's_cmp_ge_u32 s{sT0}, 72')
    k(f's_cbranch_scc1 {done}')
    k(f'v_lshrrev_b32 v2, 3, v{vL}')
    k(f'v_and_b32 v3, 7, v{vL}')
    ext = k.label('ext'); rowd = k.label('rowd')
    k(f's_cmp_ge_u32 s{sT0}, 64')
    k(f's_cbranch_scc1 {ext}')
    k(f's_lshr_b32 s{sT1}, s{sT0}, 1')
    k(f's_mul_i32 s{sT1}, s{sT1}, 18')
    k(f's_and_b32 s{sT2}, s{sT0}, 1')
    k(f's_lshl_b32 s{sT2}, s{sT2}, 2')
    k(f's_add_u32 s{sT1}, s{sT1}, s{sT2}')
    k(f'v_lshrrev_b32 v4, 2, v2')
    k(f'v_lshlrev_b32 v4, 3, v4')
    k(f'v_and_b32 v5, 3, v2')
    k(f'v_add3_u32 v4, v4, v5, s{sT1}')
    k(f's_branch {rowd}')
    k(f'{ext}:')
    k(f's_sub_u32 s{sT1}, s{sT0}, 64')
    k(f's_mul_i32 s{sT1}, s{sT1}, 72')
    k(f's_add_u32 s{sT1}, s{sT1}, 16')
    k(f'v_lshrrev_b32 v4, 1, v2')
    k(f'v_mul_u32_u24 v4, 18, v4')
    k(f'v_and_b32 v5, 1, v2')
    k(f'v_add3_u32 v4, v4, v5, s{sT1}')
    k(f'{rowd}:')
    k(f'v_mul_u32_u24 v4, 1152, v4')
    k(f'v_lshl_add_u32 v4, v3, 4, v4')
    for i in range(9):
        k(f'buffer_load_dwordx4 {vr(XD+4*i,4)}, v4, {sr(WO,4)}, 0 offen offset:{128*i}')
    k('v_mov_b32 v8, 0')
    k('v_mov_b32 v9, 0')
    k('s_waitcnt vmcnt(0)')
    for r in range(36):
        k(f'v_dot2c_f32_bf16 v{8+(r&1)}, s{sONE}, v{XD+r}')
    k('v_add_f32 v8, v8, v9')
    for qp in ('quad_perm:[1,0,3,2]', 'quad_perm:[2,3,0,1]', 'row_half_mirror'):
        k(f'v_add_f32_dpp v8, v8, v8 {qp} row_mask:0xf bank_mask:0xf')
    k(f'v_mul_f32 v8, {f32bits(1/576):#x}, v8')
    k('v_cvt_pk_bf16_f32 v9, v8, v8')
    k('v_lshlrev_b32 v10, 16, v9')
    k('v_sub_f32 v10, v8, v10')
    k('v_cvt_pk_bf16_f32 v10, v10, v10')
    k(f's_lshl_b32 s{sT1}, s{sT0}, 5')
    k(f's_add_u32 s{sT1}, s{sT1}, {RM:#x}')
    k('v_lshlrev_b32 v2, 1, v2')
    k(f'buffer_store_short v9, v2, {sr(WS,4)}, s{sT1} offen')
    k(f'buffer_store_short v10, v2, {sr(WS,4)}, s{sT1} offen offset:16')
    k(f'{done}:')
    k('s_endpgm')
    return k.finish(vgpr=216, accum=216), (256, 256, K1_LDS)
```

```python
QI  = 0x0
KI  = 0x280000
VT  = 0x500000
OI  = 0x740000
HB  = 0x980000
MUX = 0xBC0000
MU  = 0xBC2000
SS  = 0xBC4000
RM  = 0xBD4000
WOP = 0xC00000
WGU = 0xD00000
WD  = 0x1800000
ACT = 0x1E00000
PROF = 0x3000000
WS_END = 0x3200000
OOB = 0x7F000000
```

```python
import sys
from k1 import gen_k1
from k2 import gen_k2
from k35 import gen_k3
from k5 import gen_k5
from k4 import gen_k4
NAME = 'sequential_preLN__softmax_full_mha__swiglu_ffn__prompt'
def build(path, gens):
    ref = open(f'cdna_kernels/{NAME}.s.ref').read().split('\n')
    head = [l for l in ref if l.startswith(';') and '@launch' not in l and 'Override launch' not in l and 'Harness parses' not in l]
    ks = [g() for g in gens]
    out = list(head)
    for (t, d), (grid, block, lds) in ks:
        name = t.split('\n')[0].split()[1]
        out.append(f'; @launch kernel={name} grid=({grid},1,1) block=({block},1,1) lds={lds}')
    out.append('.amdgcn_target "amdgcn-amd-amdhsa--gfx950"')
    out.append('.text')
    seen = set()
    for (t, d), _ in ks:
        if t in seen: continue
        seen.add(t); out.append(t)
    out.append('code_end:')
    out.append('.section .rodata,"a"')
    seen = set()
    for (t, d), _ in ks:
        if d in seen: continue
        seen.add(d); out.append(d)
    open(path, 'w').write('\n'.join(out))
if __name__ == '__main__':
    import os, asmlib
    asmlib.K.prof = os.environ.get('PROF', '0') == '1'
    build(sys.argv[1] if len(sys.argv) > 1 else f'cdna_kernels/{NAME}.s', [gen_k1, gen_k2, gen_k3, gen_k4, gen_k5])
```

```python
import re

REG_RE = re.compile(r'\b([vas])(\d+)\b|\b([vas])\[(\d+):(\d+)\]')

def regs_of(tok):
    out = set()
    t = tok.strip()
    for m in REG_RE.finditer(t):
        if m.group(1):
            out.add((m.group(1), int(m.group(2))))
        else:
            for i in range(int(m.group(4)), int(m.group(5)) + 1):
                out.add((m.group(3), i))
    if re.search(r'\bvcc\b', t): out |= {('s', 106), ('s', 107)}
    if re.search(r'\bvcc_lo\b', t): out.add(('s', 106))
    if re.search(r'\bvcc_hi\b', t): out.add(('s', 107))
    if re.search(r'\bexec\b', t): out |= {('s', 126), ('s', 127)}
    if re.search(r'\bm0\b', t): out.add(('s', 124))
    return out

TRANS = ('v_exp_f32', 'v_log_f32', 'v_rcp_f32', 'v_rsq_f32', 'v_sqrt_f32', 'v_sin_f32', 'v_cos_f32', 'v_rcp_iflag_f32')
RMW = ('v_fmac_f32', 'v_dot2c_f32_bf16', 'v_pk_fmac_f16')

def mfma_passes(op):
    if '32x32x16' in op or '32x32x8' in op: return 8
    if '16x16x32' in op or '16x16x16' in op: return 4
    if '32x32x4_2b' in op: return 16
    raise ValueError(op)

class Ins:
    __slots__ = ('text', 'op', 'ops', 'dst', 'src', 'kind', 'mods', 'A', 'B', 'C', 'label', 'target', 'data')
    def __init__(self, text):
        self.text = text
        self.label = None; self.target = None
        self.dst = set(); self.src = set(); self.kind = 'other'; self.op = ''
        self.A = self.B = self.C = set(); self.data = set()
        t = text.split(';')[0].strip()
        if not t:
            self.kind = 'none'; return
        if t.endswith(':'):
            self.kind = 'label'; self.label = t[:-1]; return
        if t.startswith('.'):
            self.kind = 'none'; return
        parts = t.split(None, 1)
        op = parts[0]; self.op = op
        rest = parts[1] if len(parts) > 1 else ''
        ops = []; depth = 0; cur = ''
        for ch in rest:
            if ch in '[(': depth += 1
            if ch in '])': depth -= 1
            if ch == ',' and depth == 0:
                ops.append(cur.strip()); cur = ''
            else: cur += ch
        if cur.strip(): ops.append(cur.strip())
        self.ops = ops
        base = re.sub(r'_(e32|e64|dpp|sdwa)$', '', op)
        R = [regs_of(o) for o in ops]
        allsrc = lambda lst: set().union(*lst) if lst else set()
        if op.startswith('v_mfma'):
            self.kind = 'mfma'
            self.dst = R[0]; self.A = R[1]; self.B = R[2]; self.C = R[3]
            self.src = R[1] | R[2] | R[3]
        elif op.startswith('v_'):
            self.kind = 'valu'
            if base.startswith('v_cmp'):
                self.dst = R[0]; self.src = allsrc(R[1:])
            elif base in ('v_readfirstlane_b32', 'v_readlane_b32'):
                self.dst = R[0]; self.src = allsrc(R[1:])
            elif base.startswith('v_permlane') and 'swap' in base:
                self.dst = R[0] | R[1]; self.src = R[0] | R[1]
            elif base in ('v_add_co_u32', 'v_sub_co_u32', 'v_addc_co_u32'):
                self.dst = R[0] | R[1]; self.src = allsrc(R[2:])
            elif base == 'v_nop':
                pass
            else:
                self.dst = R[0]; self.src = allsrc(R[1:])
                if base in RMW: self.src |= R[0]
                if 'dpp' in op or 'quad_perm' in rest or 'row_' in rest: self.src |= R[0]
        elif op.startswith('ds_'):
            self.kind = 'ds'
            if op.startswith('ds_read') or op.startswith('ds_bpermute') or op.startswith('ds_swizzle'):
                self.dst = R[0]; self.src = allsrc(R[1:])
            else:
                self.src = allsrc(R); self.data = allsrc(R[1:])
        elif op.startswith('buffer_') or op.startswith('global_'):
            self.kind = 'vmem'
            if op in ('buffer_inv', 'buffer_wbl2'):
                pass
            elif 'load' in op:
                if re.search(r'\blds\b', rest) or 'load_lds' in op:
                    self.src = allsrc(R) | {('s', 124)}; self.kind = 'vmem_lds'
                else:
                    self.dst = R[0]; self.src = allsrc(R[1:])
            elif 'store' in op:
                self.src = allsrc(R)
                self.data = R[0] if op.startswith('buffer_') else R[1]
            elif 'atomic' in op:
                self.src = allsrc(R)
                if re.search(r'\bsc0\b', rest): self.dst = R[0]
        elif op.startswith('s_load') or op.startswith('s_memtime') or op.startswith('s_memrealtime') or op.startswith('s_buffer_load'):
            self.kind = 'smem'; self.dst = R[0]; self.src = allsrc(R[1:])
        elif op.startswith('s_'):
            self.kind = 'salu'
            if op in ('s_branch',) or op.startswith('s_cbranch'):
                self.kind = 'branch'; self.target = ops[0]
            elif op in ('s_waitcnt', 's_nop', 's_barrier', 's_endpgm', 's_setprio', 's_sleep'):
                self.kind = op
            elif op.startswith('s_cmp') or op.startswith('s_bitcmp'):
                self.src = allsrc(R)
            else:
                self.dst = R[0] if R else set(); self.src = allsrc(R[1:])
                if 'saveexec' in op: self.dst |= {('s', 126), ('s', 127)}
        else:
            raise ValueError('unknown instr: ' + text)

    def states(self):
        if self.kind == 's_nop': return int(self.ops[0], 0) + 1
        if self.kind in ('none', 'label'): return 0
        return 1

def is_vreg(r): return r[0] in 'va'

def need(prod, cons):
    n = 0
    base = re.sub(r'_(e32|e64|dpp|sdwa)$', '', prod.op)
    cbase = re.sub(r'_(e32|e64|dpp|sdwa)$', '', cons.op)
    if prod.kind == 'valu':
        pv = {r for r in prod.dst if is_vreg(r)}
        ps = {r for r in prod.dst if r[0] == 's'}
        if pv:
            if cons.kind == 'mfma' and pv & cons.src: n = max(n, 2)
            if cons.kind == 'valu':
                isdpp = 'dpp' in cons.op or 'quad_perm' in cons.text or 'row_' in cons.text
                if isdpp and pv & cons.src: n = max(n, 2)
                if cbase in ('v_readfirstlane_b32', 'v_readlane_b32') and pv & cons.src: n = max(n, 1)
                if cbase.startswith('v_permlane') and pv & cons.src: n = max(n, 2)
            if base in TRANS and pv & cons.src and cbase not in TRANS: n = max(n, 1)
            if base.startswith('v_dot') and (pv & (cons.src | cons.dst)):
                if cbase == base:
                    ab = set().union(*[regs_of(o) for o in cons.ops[1:3]])
                    if pv & ab: n = max(n, 3)
                else: n = max(n, 3)
        if ps:
            if cons.kind in ('vmem', 'vmem_lds') and ps & cons.src: n = max(n, 5)
            if cons.kind == 'valu' and ps & cons.src: n = max(n, 4 if 'lane' in cbase else 2)
            if cons.kind in ('salu', 'branch', 'smem') and ps & cons.src: n = max(n, 1)
            if cons.kind == 'branch' and 'vcc' in cons.op and ps & {('s', 106), ('s', 107)}: n = max(n, 5)
            if ps & {('s', 126), ('s', 127)}: n = max(n, 5)
    if prod.kind == 'salu' and ('s', 124) in prod.dst and cons.kind == 'vmem_lds': n = max(n, 1)
    if prod.kind == 'mfma':
        p = mfma_passes(prod.op)
        if cons.kind == 'mfma':
            if prod.dst & (cons.A | cons.B): n = max(n, p + 4)
            if prod.dst & cons.C:
                if prod.dst == cons.C and mfma_passes(cons.op) == p: n = max(n, 0)
                else: n = max(n, p + 2)
            elif prod.dst & cons.dst:
                n = max(n, p + 2)
        elif cons.kind in ('valu', 'ds', 'vmem', 'vmem_lds'):
            if prod.dst & (cons.src | cons.dst): n = max(n, p + 4)
            if cons.kind == 'valu' and prod.C & cons.dst: n = max(n, p - 1)
    if prod.kind == 'vmem' and prod.data and len(prod.data) >= 3:
        if prod.data & cons.dst: n = max(n, 2 if cons.kind in ('valu', 'mfma') else 1)
    return n

MAXD = 22

def insert_nops(lines):
    ins = [Ins(l) for l in lines]
    changed = True
    rounds = 0
    while changed:
        changed = False; rounds += 1
        assert rounds < 50
        labels = {x.label: i for i, x in enumerate(ins) if x.kind == 'label'}
        inserts = {}
        for i, p in enumerate(ins):
            if p.kind not in ('valu', 'salu', 'mfma', 'vmem'): continue
            stack = [(i + 1, 0)]
            seen = set()
            while stack:
                j, d = stack.pop()
                while j < len(ins) and d < MAXD:
                    if (j, d) in seen: break
                    seen.add((j, d))
                    c = ins[j]
                    if c.kind not in ('none', 'label'):
                        nn = need(p, c)
                        if nn > d:
                            inserts[j] = max(inserts.get(j, 0), nn - d)
                        if c.kind == 's_endpgm': break
                        if c.kind == 'branch':
                            stack.append((labels[c.target], d + 1))
                            if c.op == 's_branch': break
                    d += c.states(); j += 1
        if inserts:
            changed = True
            j0 = min(inserts)
            out = []
            last = -100
            for j, x in enumerate(ins):
                if j in inserts and j - last > MAXD:
                    k = inserts[j]
                    while k > 0:
                        m = min(k, 16)
                        out.append(Ins(f'    s_nop {m-1}')); k -= m
                    last = j
                out.append(x)
            ins = out
    return [x.text for x in ins]

def verify_waits(lines, name=''):
    ins = [Ins(l) for l in lines]
    labels = {x.label: i for i, x in enumerate(ins) if x.kind == 'label'}
    errs = set()
    def run(start, vm, lg, taken, depth):
        j = start
        while j < len(ins):
            c = ins[j]
            if c.kind in ('none', 'label'): j += 1; continue
            if c.kind == 's_endpgm': return
            if c.kind == 's_waitcnt':
                m = re.search(r'vmcnt\((\d+)\)', c.text)
                if m:
                    n = int(m.group(1)); vm = vm[len(vm) - n:] if n < len(vm) else vm
                    if n == 0: vm = []
                m = re.search(r'lgkmcnt\((\d+)\)', c.text)
                if m:
                    n = int(m.group(1))
                    if n == 0: lg = []
                    elif not any(k == 'smem' for k, _ in lg):
                        lg = lg[len(lg) - n:] if n < len(lg) else lg
                j += 1; continue
            touched = c.src | c.dst
            for q in (vm, lg):
                for k, d in q:
                    if d & c.src or (d & c.dst and not (c.kind in ('vmem', 'ds') and k == c.kind)):
                        errs.add(f'{name}: line {j}: "{c.text.strip()}" touches in-flight {sorted(d & touched)[:4]}')
            if c.kind in ('vmem', 'vmem_lds'):
                vm = vm + [('vmem', set(c.dst))]
                if len(vm) > 63: errs.add(f'{name}: line {j}: vmcnt overflow >63')
            elif c.kind == 'ds': lg = lg + [('ds', set(c.dst))]
            elif c.kind == 'smem': lg = lg + [('smem', set(c.dst))]
            if c.kind == 'branch':
                t = labels[c.target]
                if t <= j:
                    cnt = taken.get(j, 0)
                    if cnt < 2:
                        taken = dict(taken); taken[j] = cnt + 1
                        j = t; continue
                    if c.op == 's_branch': return
                else:
                    if c.op == 's_branch': j = t; continue
                    if depth < 6 and (j, 'f') not in taken:
                        t2 = dict(taken); t2[(j, 'f')] = 1
                        run(t, list(vm), list(lg), t2, depth + 1)
            j += 1
    run(0, [], [], {}, 0)
    return sorted(errs)

class K:
    def __init__(self, name):
        self.name = name; self.L = []
        self.nlab = 0
    def __call__(self, s):
        for l in s.split('\n'):
            l = l.strip()
            if l: self.L.append(l if l.endswith(':') else '    ' + l)
    prof = False
    kidx = 0
    def stamp(self, i, real=False):
        if not K.prof: return
        self(f's_memrealtime s[{70+2*i}:{71+2*i}]' if real else f's_memtime s[{70+2*i}:{71+2*i}]')
    def stamp_flush(self, wsrd, swave, n=14):
        if not K.prof: return
        from layout import PROF
        self('s_waitcnt lgkmcnt(0)')
        self(f's_lshl_b32 s68, s2, 4')
        self(f's_add_u32 s68, s68, s{swave}')
        self(f's_lshl_b32 s68, s68, 6')
        self(f's_add_u32 s68, s68, {PROF + self.kidx*256*16*64:#x}')
        self('s_mov_b64 exec, 1')
        self('v_mov_b32 v0, 0')
        for i in range(n):
            self(f'v_mov_b32 v1, s{70+2*i}')
            self(f'buffer_store_dword v1, v0, {wsrd}, s68 offen offset:{4*i}')
    def code_prefetch(self, start, end, sp, vt, vd, swave, stmp):
        self.nlab += 1
        lab = f'{self.name}_pc{self.nlab}'
        self(f's_getpc_b64 s[{sp}:{sp+1}]')
        self(f'{lab}:')
        self(f's_lshl_b32 s{stmp}, s{swave}, 13')
        self(f's_add_u32 s{stmp}, s{stmp}, {start}-{lab}')
        self(f'v_mbcnt_lo_u32_b32 v{vt}, -1, 0')
        self(f'v_mbcnt_hi_u32_b32 v{vt}, -1, v{vt}')
        self(f'v_lshl_add_u32 v{vt}, v{vt}, 7, s{stmp}')
        self(f'v_min_u32 v{vt}, {end}-{lab}-4, v{vt}')
        self(f'global_load_dword v{vd}, v{vt}, s[{sp}:{sp+1}]')
    def label(self, base='L'):
        self.nlab += 1
        return f'{self.name}_{base}{self.nlab}'
    def finish(self, vgpr, accum, sgpr=102):
        lines = insert_nops(self.L)
        errs = verify_waits([l for l in lines if 's_memtime' not in l and 's_memrealtime' not in l], self.name)
        for e in errs[:10]: print('WAITCNT WARNING', e)
        mv = ma = ms = -1
        for l in lines:
            x = Ins(l)
            for f, i in x.src | x.dst:
                if f == 'v': mv = max(mv, i)
                if f == 'a': ma = max(ma, i)
                if f == 's' and i < 102: ms = max(ms, i)
        assert mv < accum, (self.name, mv, accum)
        assert accum + ma + 1 <= vgpr or ma < 0, (self.name, ma)
        assert mv < vgpr
        nn = sum(1 for l in lines if 's_nop' in l)
        print(f'{self.name}: {len(lines)} lines, maxv {mv} maxa {ma} maxs {ms}, s_nops {nn}')
        text = f'.globl {self.name}\n.p2align 8\n.type {self.name},@function\n{self.name}:\n' + '\n'.join(lines) + '\n'
        desc = f'''.p2align 6
.amdhsa_kernel {self.name}
  .amdhsa_next_free_vgpr {vgpr}
  .amdhsa_next_free_sgpr {sgpr}
  .amdhsa_accum_offset {accum}
  .amdhsa_group_segment_fixed_size 0
  .amdhsa_kernarg_size 80
  .amdhsa_user_sgpr_count 2
  .amdhsa_user_sgpr_kernarg_segment_ptr 1
  .amdhsa_system_sgpr_workgroup_id_x 1
.end_amdhsa_kernel
'''
        return text, desc

def vr(a, n=1, f='v'):
    return f'{f}{a}' if n == 1 else f'{f}[{a}:{a+n-1}]'
def sr(a, n=1): return vr(a, n, 's')
def ar(a, n=1): return vr(a, n, 'a')
import struct
def f32bits(x): return struct.unpack('<I', struct.pack('<f', x))[0]
```

```python
from asmlib import *
from layout import *
import math

def srd(k, d, ptr, size):
    k(f's_mov_b32 s{d}, s{ptr}')
    k(f's_and_b32 s{d+1}, s{ptr+1}, 0xffff')
    k(f's_mov_b32 s{d+2}, {size:#x}')
    k(f's_mov_b32 s{d+3}, 0x00020000')

SLOT = 32768
ST = 4 * SLOT
TE, CE, RS = ST, ST + 2048, ST + 4096
K1_LDS = ST + 4096 + 512

def gen_k1():
    k = K('k1_qkv_kernel')
    X, W, WS, WO = 12, 16, 20, 24
    sTB, sCG, sWV, sPR, sONE, sT0, sT1, sT2, sXO, sWO, sM0, sCNT, sSC, sREG, sRD, sWM, sWN, sTA, sCA, sLEFT = range(28, 48)
    vL = 1
    VX, VW = 2, 6
    XA, XB, WA, WB = 10, 14, 18, 19
    LXA, LW = 20, 24
    SX, SXX, CS = 26, 28, 30
    T = 32
    WF = 48
    XF = 64
    ACC = 80
    E = 144
    done = k.label('done'); side = k.label('side')
    k(f's_cmp_ge_u32 s2, 256')
    k(f's_cbranch_scc1 {done}')
    k.kidx = 0; k.stamp(0); k.stamp(12, True)
    k('s_load_dwordx4 s[4:7], s[0:1], 0')
    k('s_load_dwordx2 s[8:9], s[0:1], 16')
    k('s_load_dwordx2 s[10:11], s[0:1], 72')
    k(f'v_lshrrev_b32 v{T}, 6, v0')
    k(f'v_and_b32 v{vL}, 63, v0')
    k(f'v_readfirstlane_b32 s{sWV}, v{T}')
    k('s_getpc_b64 s[48:49]')
    k('k1_pc:')
    k(f'v_lshlrev_b32 v{T+1}, 4, v0')
    k(f'global_load_dwordx4 {vr(E,4)}, v{T+1}, s[48:49]')
    k(f'v_add_u32 v{T+1}, 4096, v{T+1}')
    k(f'global_load_dwordx4 {vr(E+4,4)}, v{T+1}, s[48:49]')
    k(f's_bfe_u32 s{sTB}, s2, 0x20001')
    k(f's_lshl_b32 s{sTB}, s{sTB}, 2')
    k(f's_bfe_u32 s{sT0}, s2, 0x20003')
    k(f's_add_u32 s{sTB}, s{sTB}, s{sT0}')
    k(f's_lshr_b32 s{sT1}, s2, 5')
    k(f's_and_b32 s{sT0}, s2, 1')
    k(f's_mul_i32 s{sCG}, s{sT0}, 7')
    k(f's_add_u32 s{sCG}, s{sCG}, s{sT1}')
    k(f's_mov_b32 s{sONE}, 0x3f803f80')
    k(f's_cmp_eq_u32 s{sT1}, 7')
    k(f's_cbranch_scc1 {side}')
    k(f's_lshr_b32 s{sWM}, s{sWV}, 1')
    k(f's_and_b32 s{sWN}, s{sWV}, 1')
    k(f's_lshl_b32 s{sPR}, s{sCG}, 1')
    k(f's_add_u32 s{sPR}, s{sPR}, s{sWN}')
    k(f'v_lshrrev_b32 v{T}, 3, v{vL}')
    k(f'v_mul_u32_u24 v{T}, 1152, v{T}')
    k(f'v_and_b32 v{T+1}, 7, v{vL}')
    k(f'v_lshrrev_b32 v{T+2}, 4, v{vL}')
    k(f'v_xor_b32 v{T+1}, v{T+1}, v{T+2}')
    k(f'v_lshl_add_u32 v{VX}, v{T+1}, 4, v{T}')
    k(f'v_xor_b32 v{VX+1}, 64, v{VX}')
    k(f'v_add_u32 v{VX+1}, {8*1152-1024}, v{VX+1}')
    k(f'v_add_u32 v{VX+2}, {2*(8*1152-1024)}, v{VX}')
    k(f'v_add_u32 v{VX+3}, {2*(8*1152-1024)}, v{VX+1}')
    k(f'v_bfe_u32 v{T+3}, v{vL}, 2, 2')
    k(f'v_and_b32 v{T+4}, 3, v{vL}')
    k(f'v_mul_u32_u24 v{VW}, 3456, v{T+3}')
    k(f'v_lshl_add_u32 v{VW}, v{T+2}, 6, v{VW}')
    k(f'v_lshl_add_u32 v{VW}, v{T+4}, 4, v{VW}')
    for i in range(1, 4): k(f'v_add_u32 v{VW+i}, {i*(4*3456-1024)}, v{VW}')
    k(f's_lshl_b32 s{sT0}, s{sTB}, 2')
    k(f's_add_u32 s{sT0}, s{sT0}, s{sWV}')
    k(f's_mul_i32 s{sXO}, s{sT0}, {32*1152}')
    k(f's_mul_i32 s{sWO}, s{sWV}, {16*3456}')
    k(f's_lshl_b32 s{sT0}, s{sCG}, 8')
    k(f's_add_u32 s{sWO}, s{sWO}, s{sT0}')
    k(f's_lshl_b32 s{sM0}, s{sWV}, 12')
    k(f's_mov_b32 s{sLEFT}, 9')
    k('s_waitcnt lgkmcnt(0)')
    k.stamp(7)
    srd(k, X, 4, 2048 * 1152)
    srd(k, W, 6, 576 * 3456)
    import os
    NT = ' nt' if os.environ.get('K1NT') else ''
    def dma(j):
        out = []
        if j == 0: out.append(f's_mov_b32 m0, s{sM0}')
        if j == 4: out.append(f's_add_u32 m0, s{sM0}, 16384')
        if j < 4: out.append(f'buffer_load_dwordx4 v{VX+j}, {sr(X,4)}, s{sXO} offen offset:{1024*j} lds' + NT)
        else: out.append(f'buffer_load_dwordx4 v{VW+j-4}, {sr(W,4)}, s{sWO} offen offset:{1024*(j-4)} lds' + NT)
        if j == 7:
            out += [f's_add_u32 s{sXO}, s{sXO}, 128', f's_add_u32 s{sWO}, s{sWO}, {64*3456}',
                    f's_add_u32 s{sM0}, s{sM0}, {SLOT}', f's_and_b32 s{sM0}, s{sM0}, {4*SLOT-1:#x}',
                    f's_sub_u32 s{sLEFT}, s{sLEFT}, 1', f's_cmp_eq_u32 s{sLEFT}, 0',
                    f's_cselect_b32 s{sXO}, {OOB:#x}, s{sXO}']
        return out
    import os
    if os.environ.get('K1PF', '0') == '1':
        F0 = int(os.environ.get('K1F0', '3'))
        nl = 9 - F0
        px = -(-128*nl // 28); pw = 64*nl*2 // 16
        k(f's_lshr_b32 s{sT0}, s2, 5')
        k(f's_lshl_b32 s{sT0}, s{sT0}, 2')
        k(f's_add_u32 s{sT0}, s{sT0}, s{sWV}')
        k(f's_mul_i32 s{sT0}, s{sT0}, {px}')
        k(f'v_min_u32 v{T+5}, {px-1}, v{vL}')
        k(f'v_add_u32 v{T+5}, s{sT0}, v{T+5}')
        k(f'v_min_u32 v{T+5}, {128*nl-1}, v{T+5}')
        k(f'v_mul_u32_u24 v{T+6}, {-(-65536//nl)}, v{T+5}')
        k(f'v_lshrrev_b32 v{T+6}, 16, v{T+6}')
        k(f'v_mul_u32_u24 v{T+6}, {1152 - 128*nl}, v{T+6}')
        k(f'v_lshl_add_u32 v{T+6}, v{T+5}, 7, v{T+6}')
        k(f's_mul_i32 s{sT1}, s{sTB}, {128*1152}')
        k(f's_add_u32 s{sT1}, s{sT1}, {128*F0}')
        k(f's_and_b32 s{sT0}, s{sTB}, 3')
        k(f's_lshl_b32 s{sT0}, s{sT0}, 2')
        k(f's_add_u32 s{sT0}, s{sT0}, s{sWV}')
        k(f's_mul_i32 s{sT0}, s{sT0}, {pw}')
        k(f'v_min_u32 v{T+5}, {pw-1}, v{vL}')
        k(f'v_add_u32 v{T+5}, s{sT0}, v{T+5}')
        k(f'v_lshrrev_b32 v{T+7}, 1, v{T+5}')
        k(f'v_mul_u32_u24 v{T+7}, 3456, v{T+7}')
        k(f'v_and_b32 v{T+5}, 1, v{T+5}')
        k(f'v_lshl_add_u32 v{T+7}, v{T+5}, 7, v{T+7}')
        k(f's_lshl_b32 s{sT2}, s{sCG}, 8')
        k(f's_add_u32 s{sT2}, s{sT2}, {64*F0*3456}')
        NP = 2
    else: NP = 3
    pl = k.label('pl')
    k(f's_mov_b32 s{sCNT}, 3')
    k(f'{pl}:')
    for j in range(8):
        for l in dma(j): k(l)
    k(f's_sub_u32 s{sCNT}, s{sCNT}, 1')
    k(f's_cmp_lg_u32 s{sCNT}, 0')
    k(f's_cbranch_scc1 {pl}')
    for j in range(2):
        for l in dma(j): k(l)
    if NP == 2:
        k(f'buffer_load_dword v{E+8}, v{T+6}, {sr(X,4)}, s{sT1} offen')
        k(f'buffer_load_dword v{E+9}, v{T+7}, {sr(W,4)}, s{sT2} offen')
    srd(k, WS, 10, WS_END)
    k(f's_mul_i32 s{sREG}, s{sPR}, 57')
    k(f's_lshr_b32 s{sREG}, s{sREG}, 9')
    k(f's_lshl_b32 s{sTA}, s{sWM}, 1')
    k(f's_add_u32 s{sTA}, s{sTA}, s{sWN}')
    k(f's_lshl_b32 s{sCA}, s{sWN}, 1')
    k(f's_add_u32 s{sCA}, s{sCA}, s{sWM}')
    k(f'v_lshrrev_b32 v{T+5}, 5, v{vL}')
    k(f'v_and_b32 v{T+6}, 31, v{vL}')
    k(f'v_bfe_u32 v{T+7}, v{vL}, 1, 3')
    k(f'v_xor_b32 v{T+7}, v{T+7}, v{T+5}')
    k(f'v_lshlrev_b32 v{T+7}, 4, v{T+7}')
    k(f'v_lshl_add_u32 v{T+7}, v{T+6}, 7, v{T+7}')
    k(f's_lshl_b32 s{sT0}, s{sTA}, 12')
    k(f'v_add_u32 v{LXA}, s{sT0}, v{T+7}')
    for ks in range(1, 4): k(f'v_xor_b32 v{LXA+ks}, {32*ks}, v{LXA}')
    k(f'v_lshlrev_b32 v{T+8}, 3, v{T+4}')
    k(f'v_and_b32 v{T+9}, 1, v{T+4}')
    k(f'v_lshlrev_b32 v{T+9}, 4, v{T+9}')
    k(f'v_lshrrev_b32 v{T+10}, 1, v{T+4}')
    k(f'v_lshl_add_u32 v{T+9}, v{T+10}, 3, v{T+9}')
    k(f's_cmp_ge_u32 s{sREG}, 2')
    k(f's_cselect_b64 vcc, -1, 0')
    k(f'v_cndmask_b32 v{LW}, v{T+9}, v{T+8}, vcc')
    k(f'v_lshl_add_u32 v{LW}, v{T+3}, 6, v{LW}')
    k(f'v_bfe_u32 v{T+8}, v{vL}, 4, 1')
    k(f'v_lshl_add_u32 v{LW}, v{T+8}, 5, v{LW}')
    k(f'v_lshl_add_u32 v{LW}, v{T+5}, 11, v{LW}')
    k(f's_lshl_b32 s{sT0}, s{sCA}, 8')
    k(f's_add_u32 s{sT0}, s{sT0}, 16384')
    k(f'v_add_u32 v{LW}, s{sT0}, v{LW}')
    for i in range(6): k(f'v_mov_b32 v{SX+i}, 0')
    k(f's_mov_b32 s{sRD}, 0')
    def setaddr():
        out = [f'v_add_u32 v{XA+ks}, s{sRD}, v{LXA+ks}' for ks in range(4)]
        out += [f'v_xor_b32 v{XB+ks}, 4096, v{XA+ks}' for ks in range(4)]
        out += [f'v_add_u32 v{WA}, s{sRD}, v{LW}', f'v_xor_b32 v{WB}, 256, v{WA}',
                f's_add_u32 s{sRD}, s{sRD}, {SLOT}', f's_and_b32 s{sRD}, s{sRD}, {4*SLOT-1:#x}']
        return out
    def reads(ks, buf):
        out = []
        out.append(f'ds_read_b128 {vr(XF+8*buf,4)}, v{XA+ks}')
        for rd in range(2): out.append(f'ds_read_b64_tr_b16 {vr(WF+8*buf+2*rd,2)}, v{WA} offset:{4096*ks+1024*rd}')
        out.append(f'ds_read_b128 {vr(XF+8*buf+4,4)}, v{XB+ks}')
        for rd in range(2): out.append(f'ds_read_b64_tr_b16 {vr(WF+8*buf+4+2*rd,2)}, v{WB} offset:{4096*ks+1024*rd}')
        return out
    for l in setaddr(): k(l)
    for i in range(64): k(f'v_mov_b32 v{ACC+i}, 0')
    k(f's_waitcnt vmcnt({18 + (2 if NP == 2 else 0)})')
    k.stamp(1)
    k('s_barrier')
    for l in reads(0, 0): k(l)
    k(f'v_add_u32 v{XA}, s{sRD}, v{LXA}')
    k(f'v_xor_b32 v{XB}, 4096, v{XA}')
    k(f's_mov_b32 s{sCNT}, 9')
    vpath = k.label('vpath'); epi = k.label('epi')
    def gemm(isV):
        loop = k.label('loop')
        k(f'{loop}:')
        for ks in range(4):
            buf = ks & 1
            if ks == 3:
                k('s_waitcnt vmcnt(16) lgkmcnt(0)')
                k('s_barrier')
            else:
                k('s_waitcnt lgkmcnt(0)')
            nk = (ks + 1) & 3
            rds = reads(nk, buf ^ 1)
            upd = [f'v_add_u32 v{XA+nk}, s{sRD}, v{LXA+nk}', f'v_xor_b32 v{XB+nk}, 4096, v{XA+nk}']
            if ks == 2: upd += [f'v_add_u32 v{WA}, s{sRD}, v{LW}', f'v_xor_b32 v{WB}, 256, v{WA}',
                                f's_add_u32 s{sRD}, s{sRD}, {SLOT}', f's_and_b32 s{sRD}, s{sRD}, {4*SLOT-1:#x}']
            dm1 = dma((2*ks + 2) & 7); dm2 = dma((2*ks + 3) & 7)
            dots = []
            for r in range(4):
                x = XF + 8*buf + r; w = WF + 8*buf + r
                dots += [f'v_dot2c_f32_bf16 v{SX+(r&1)}, s{sONE}, v{x}', f'v_dot2c_f32_bf16 v{SXX+(r&1)}, v{x}, v{x}',
                         f'v_dot2c_f32_bf16 v{CS+(r&1)}, s{sONE}, v{w}']
            import os
            X_ = os.environ.get('K1X', '')
            if 'nodots' in X_: dots = []
            if 'nodma' in X_: dm1 = [l for l in dm1 if not l.startswith('buffer')]; dm2 = [l for l in dm2 if not l.startswith('buffer')]
            if 'nords' in X_: rds = []
            fills = [rds[:3], dm1, rds[3:] + upd, dm2 + dots]
            j = 0
            for ct in range(2):
                for tt in range(2):
                    a = ACC + 16*(2*ct+tt); wf = vr(WF+8*buf+4*ct,4); xf = vr(XF+8*buf+4*tt,4)
                    if isV: k(f'v_mfma_f32_32x32x16_bf16 {vr(a,16)}, {xf}, {wf}, {vr(a,16)}')
                    else:   k(f'v_mfma_f32_32x32x16_bf16 {vr(a,16)}, {wf}, {xf}, {vr(a,16)}')
                    for l in fills[j]: k(l)
                    j += 1
        k(f's_sub_u32 s{sCNT}, s{sCNT}, 1')
        k(f's_cmp_lg_u32 s{sCNT}, 0')
        k(f's_cbranch_scc1 {loop}')
    k(f's_cmp_ge_u32 s{sREG}, 2')
    k(f's_cbranch_scc1 {vpath}')
    gemm(False)
    k(f's_branch {epi}')
    k(f'{vpath}:')
    gemm(True)
    k(f'{epi}:')
    k.stamp(2)
    for a in (SX, SXX, CS): k(f'v_add_f32 v{a}, v{a}, v{a+1}')
    for a in (SX, SXX, CS): k(f'v_mov_b32 v{a+1}, v{a}')
    for a in (SX, SXX, CS): k(f'v_permlane32_swap_b32 v{a}, v{a+1}')
    for a in (SX, SXX, CS): k(f'v_add_f32 v{a}, v{a}, v{a+1}')
    k(f'v_mul_f32 v{SX}, {f32bits(-1/576):#x}, v{SX}')
    k(f'v_mul_f32 v{SXX}, {f32bits(1/576):#x}, v{SXX}')
    k(f'v_fma_f32 v{SXX}, -v{SX}, v{SX}, v{SXX}')
    k(f'v_max_f32 v{SXX}, 0, v{SXX}')
    k(f'v_add_f32 v{SXX}, {f32bits(1e-5):#x}, v{SXX}')
    k(f'v_rsq_f32 v{SXX}, v{SXX}')
    TX, CX = XF, WF
    k('s_waitcnt lgkmcnt(0)')
    k(f'v_cvt_pk_bf16_f32 v{TX}, v{SX}, v{SX}')
    k(f'v_lshlrev_b32 v{T}, 16, v{TX}')
    k(f'v_sub_f32 v{T}, v{SX}, v{T}')
    k(f'v_cvt_pk_bf16_f32 v{TX+1}, v{T}, 0')
    k(f'v_cvt_pk_bf16_f32 v{CX+1}, v{CS}, 0')
    k(f'v_lshlrev_b32 v{T+1}, 16, v{CX+1}')
    k(f'v_sub_f32 v{T+1}, v{CS}, v{T+1}')
    k(f'v_cvt_pk_bf16_f32 v{CX}, v{CS}, v{T+1}')
    k(f'v_cmp_gt_u32 vcc, 32, v{vL}')
    k(f'v_cndmask_b32 v{TX}, 0, v{TX}, vcc')
    k(f'v_cndmask_b32 v{TX+1}, 0, v{TX+1}, vcc')
    k(f's_lshl_b32 s{sT0}, s{sTA}, 9')
    k(f's_add_u32 s{sT0}, s{sT0}, {TE}')
    k(f'v_lshl_add_u32 v{T+2}, v{vL}, 3, s{sT0}')
    k(f's_lshl_b32 s{sT0}, s{sCA}, 9')
    k(f's_add_u32 s{sT0}, s{sT0}, {CE}')
    k(f'v_lshl_add_u32 v{T+3}, v{vL}, 3, s{sT0}')
    k(f's_lshl_b32 s{sT0}, s{sTA}, 7')
    k(f's_add_u32 s{sT0}, s{sT0}, {RS}')
    k(f'v_lshl_add_u32 v{T+4}, v{T+6}, 2, s{sT0}')
    k(f'ds_write_b64 v{T+2}, {vr(TX,2)}')
    k(f'ds_write_b64 v{T+3}, {vr(CX,2)}')
    k(f'ds_write_b32 v{T+4}, v{SXX}')
    k(f'v_xor_b32 v{T+2}, 512, v{T+2}')
    k(f'v_xor_b32 v{T+3}, 512, v{T+3}')
    k(f'v_xor_b32 v{T+4}, 128, v{T+4}')
    k(f's_lshl_b32 s{sT2}, s{sTB}, 2')
    k(f's_add_u32 s{sTA}, s{sTA}, s{sT2}')
    nomean = k.label('nomean')
    k(f's_cmp_lg_u32 s{sCG}, 0')
    k(f's_cbranch_scc1 {nomean}')
    k(f's_lshl_b32 s{sT1}, s{sTA}, 7')
    k(f's_add_u32 s{sT1}, s{sT1}, {MUX:#x}')
    k(f'v_sub_f32 v{T}, 0, v{SX}')
    k(f'v_lshlrev_b32 v{T+1}, 2, v{T+6}')
    k(f'buffer_store_dword v{T}, v{T+1}, {sr(WS,4)}, s{sT1} offen')
    k(f'{nomean}:')
    k('s_waitcnt lgkmcnt(0)')
    k('s_barrier')
    k(f's_cmp_eq_u32 s{sREG}, 3')
    k(f's_cbranch_scc1 {done}')
    k(f'ds_read_b64 {vr(TX+2,2)}, v{T+2}')
    k(f'ds_read_b64 {vr(CX+2,2)}, v{T+3}')
    k(f's_mul_i32 s{sT0}, s{sREG}, 9')
    k(f's_sub_u32 s{sT0}, s{sPR}, s{sT0}')
    k(f's_lshl_b32 s{sT0}, s{sT0}, 1')
    k(f's_add_u32 s{sCA}, s{sT0}, s{sWM}')
    vepi = k.label('vepi')
    k(f's_cmp_eq_u32 s{sREG}, 2')
    k(f's_cbranch_scc1 {vepi}')
    k(f'ds_read_b32 v{SXX+1}, v{T+4}')
    cq = math.log2(math.e) / math.sqrt(18.0)
    k(f's_cmp_eq_u32 s{sREG}, 0')
    k(f's_cselect_b32 s{sSC}, {f32bits(cq):#x}, 1.0')
    k(f's_cselect_b32 s{sT1}, 0, {KI:#x}')
    k(f'v_lshlrev_b32 v{T}, 4, v{T+6}')
    k(f'v_lshl_add_u32 v{T}, v{T+5}, 15, v{T}')
    k(f'v_add_u32 v{T+1}, 65536, v{T}')
    k('s_waitcnt lgkmcnt(0)')
    for ct in range(2):
        for tt in range(2):
            a = ACC + 16*(2*ct+tt)
            k(f'v_mfma_f32_32x32x8_bf16 {vr(a,16)}, {vr(CX+2*ct,2)}, {vr(TX+2*tt,2)}, {vr(a,16)}')
    k(f'v_mul_f32 v{SXX}, s{sSC}, v{SXX}')
    k(f'v_mul_f32 v{SXX+1}, s{sSC}, v{SXX+1}')
    for ct in range(2):
        for tt in range(2):
            a = ACC + 16*(2*ct+tt)
            k(f's_xor_b32 s{sT0}, s{sCA}, {ct}')
            k(f's_lshl_b32 s{sT0}, s{sT0}, 17')
            k(f's_xor_b32 s{sT2}, s{sTA}, {tt}')
            k(f's_lshl_b32 s{sT2}, s{sT2}, 9')
            k(f's_add_u32 s{sT0}, s{sT0}, s{sT2}')
            k(f's_add_u32 s{sT0}, s{sT0}, s{sT1}')
            for u in range(2):
                for i in range(4):
                    r = a + 8*u + 2*i
                    k(f'v_pk_mul_f32 {vr(r,2)}, {vr(r,2)}, {vr(SXX,2)} op_sel:[0,{tt}] op_sel_hi:[1,{tt}]')
                for i in range(4):
                    k(f'v_cvt_pk_bf16_f32 v{a+8*u+i}, v{a+8*u+2*i}, v{a+8*u+2*i+1}')
                k(f'buffer_store_dwordx4 {vr(a+8*u,4)}, v{T+u}, {sr(WS,4)}, s{sT0} offen sc1')
    k('s_waitcnt vmcnt(0)') if K.prof else None
    k.stamp(3); k.stamp(13, True); k.stamp_flush(sr(WS,4), sWV)
    k('s_endpgm')
    k(f'{vepi}:')
    k(f'v_and_b32 v{T+4}, {0xffffff80:#x}, v{T+4}')
    k(f'v_lshl_add_u32 v{T+4}, v{T+5}, 4, v{T+4}')
    k(f'v_xor_b32 v{T+7}, 128, v{T+4}')
    for g in range(4):
        k(f'ds_read_b128 {vr(E+4*g,4)}, v{T+7} offset:{32*g}')
        k(f'ds_read_b128 {vr(E+16+4*g,4)}, v{T+4} offset:{32*g}')
    k(f'v_mul_u32_u24 v{T}, {VP}, v{T+5}')
    k(f'v_lshl_add_u32 v{T}, v{T+6}, 4, v{T}')
    k(f'v_add_u32 v{T+1}, {2*VP}, v{T}')
    k('s_waitcnt lgkmcnt(8)')
    for ct in range(2):
        for tt in range(2):
            a = ACC + 16*(2*ct+tt)
            k(f'v_mfma_f32_32x32x8_bf16 {vr(a,16)}, {vr(TX+2*tt,2)}, {vr(CX+2*ct,2)}, {vr(a,16)}')
    k('s_waitcnt lgkmcnt(0)')
    for ct in range(2):
        for tt in range(2):
            a = ACC + 16*(2*ct+tt)
            k(f's_xor_b32 s{sT0}, s{sCA}, {ct}')
            k(f's_lshl_b32 s{sT0}, s{sT0}, 9')
            k(f's_xor_b32 s{sT2}, s{sTA}, {tt}')
            k(f's_mul_i32 s{sT2}, s{sT2}, {4*VP}')
            k(f's_add_u32 s{sT0}, s{sT0}, s{sT2}')
            k(f's_add_u32 s{sT0}, s{sT0}, {VT:#x}')
            for u in range(2):
                for i in range(4):
                    r = a + 8*u + 2*i
                    k(f'v_pk_mul_f32 {vr(r,2)}, {vr(r,2)}, {vr(E+16*tt+8*u+2*i,2)}')
                for i in range(4):
                    k(f'v_cvt_pk_bf16_f32 v{a+8*u+i}, v{a+8*u+2*i}, v{a+8*u+2*i+1}')
                k(f'buffer_store_dwordx4 {vr(a+8*u,4)}, v{T+u}, {sr(WS,4)}, s{sT0} offen sc1')
    k('s_waitcnt vmcnt(0)') if K.prof else None
    k.stamp(3); k.stamp(13, True); k.stamp_flush(sr(WS,4), sWV)
    k('s_endpgm')
    k(f'{side}:')
    k(f's_and_b32 s{sT0}, s2, 31')
    k(f's_lshl_b32 s{sT0}, s{sT0}, 2')
    k(f's_add_u32 s{sT0}, s{sT0}, s{sWV}')
    k(f's_bfe_u32 s{sT1}, s2, 0x20003')
    k(f's_lshl_b32 s{sT1}, s{sT1}, 12')
    k(f's_add_u32 s{sT1}, s{sT1}, k2_attn_kernel-k1_pc')
    k(f'v_lshl_add_u32 v12, v0, 4, s{sT1}')
    pfl = k.label('pfl')
    k(f'{pfl}:')
    k(f'v_min_u32 v13, k3_wo_kernel-k1_pc-16, v12')
    k(f'global_load_dwordx4 v[16:19], v13, s[48:49]')
    k(f'v_add_u32 v12, 16384, v12')
    k(f's_add_u32 s{sT1}, s{sT1}, 16384')
    k(f's_cmp_lt_u32 s{sT1}, k3_wo_kernel-k1_pc')
    k(f's_cbranch_scc1 {pfl}')
    k('s_waitcnt lgkmcnt(0)')
    srd(k, WS, 10, WS_END)
    srd(k, WO, 8, 576 * 1152)
    s2 = k.label('side2')
    k(f's_cmp_ge_u32 s{sT0}, 72')
    k(f's_cbranch_scc1 {s2}')
    XD = 48
    k(f'v_lshrrev_b32 v2, 3, v{vL}')
    k(f'v_and_b32 v3, 7, v{vL}')
    ext = k.label('ext'); rowd = k.label('rowd')
    k(f's_cmp_ge_u32 s{sT0}, 64')
    k(f's_cbranch_scc1 {ext}')
    k(f's_lshr_b32 s{sT1}, s{sT0}, 1')
    k(f's_mul_i32 s{sT1}, s{sT1}, 18')
    k(f's_and_b32 s{sT2}, s{sT0}, 1')
    k(f's_lshl_b32 s{sT2}, s{sT2}, 2')
    k(f's_add_u32 s{sT1}, s{sT1}, s{sT2}')
    k(f'v_lshrrev_b32 v4, 2, v2')
    k(f'v_lshlrev_b32 v4, 3, v4')
    k(f'v_and_b32 v5, 3, v2')
    k(f'v_add3_u32 v4, v4, v5, s{sT1}')
    k(f's_branch {rowd}')
    k(f'{ext}:')
    k(f's_sub_u32 s{sT1}, s{sT0}, 64')
    k(f's_mul_i32 s{sT1}, s{sT1}, 72')
    k(f's_add_u32 s{sT1}, s{sT1}, 16')
    k(f'v_lshrrev_b32 v4, 1, v2')
    k(f'v_mul_u32_u24 v4, 18, v4')
    k(f'v_and_b32 v5, 1, v2')
    k(f'v_add3_u32 v4, v4, v5, s{sT1}')
    k(f'{rowd}:')
    k(f'v_mul_u32_u24 v4, 1152, v4')
    k(f'v_lshl_add_u32 v4, v3, 4, v4')
    for i in range(9):
        k(f'buffer_load_dwordx4 {vr(XD+4*i,4)}, v4, {sr(WO,4)}, 0 offen offset:{128*i}')
    k('v_mov_b32 v8, 0')
    k('v_mov_b32 v9, 0')
    k('s_waitcnt vmcnt(0)')
    for r in range(36):
        k(f'v_dot2c_f32_bf16 v{8+(r&1)}, s{sONE}, v{XD+r}')
    k('v_add_f32 v8, v8, v9')
    for qp in ('quad_perm:[1,0,3,2]', 'quad_perm:[2,3,0,1]', 'row_half_mirror'):
        k(f'v_add_f32_dpp v8, v8, v8 {qp} row_mask:0xf bank_mask:0xf')
    k(f'v_mul_f32 v8, {f32bits(1/576):#x}, v8')
    k('v_cvt_pk_bf16_f32 v9, v8, v8')
    k('v_lshlrev_b32 v10, 16, v9')
    k('v_sub_f32 v10, v8, v10')
    k('v_cvt_pk_bf16_f32 v10, v10, v10')
    k(f's_lshl_b32 s{sT1}, s{sT0}, 5')
    k(f's_add_u32 s{sT1}, s{sT1}, {RM:#x}')
    k('v_lshlrev_b32 v2, 1, v2')
    k(f'buffer_store_short v9, v2, {sr(WS,4)}, s{sT1} offen')
    k(f'buffer_store_short v10, v2, {sr(WS,4)}, s{sT1} offen offset:16')
    k('s_endpgm')
    k(f'{s2}:')
    s3 = k.label('side3')
    k(f's_cmp_ge_u32 s{sT0}, 76')
    k(f's_cbranch_scc1 {s3}')
    k(f's_sub_u32 s{sT0}, s{sT0}, 72')
    k(f's_mul_i32 s{sT0}, s{sT0}, {64*VP}')
    k(f's_add_u32 s{sT0}, s{sT0}, {VT + 9216:#x}')
    k(f'v_mul_u32_u24 v2, {VP}, v{vL}')
    for i in range(4): k(f'v_mov_b32 v{4+i}, s{sONE}')
    k(f'buffer_store_dwordx4 v[4:7], v2, {sr(WS,4)}, s{sT0} offen')
    k('s_endpgm')
    k(f'{s3}:')
    k(f's_cmp_ge_u32 s{sT0}, 108')
    k(f's_cbranch_scc1 {done}')
    k(f's_lshl_b32 s{sT0}, s{sT0}, 10')
    k(f's_add_u32 s{sT0}, s{sT0}, {FLG - 76*1024:#x}')
    k(f'v_lshlrev_b32 v2, 4, v{vL}')
    for i in range(4): k(f'v_mov_b32 v{4+i}, 0')
    k(f'buffer_store_dwordx4 v[4:7], v2, {sr(WS,4)}, s{sT0} offen sc1')
    k(f'{done}:')
    k('s_endpgm')
    return k.finish(vgpr=176, accum=176), (256, 256, K1_LDS)
```

```python
from asmlib import *
from layout import *
from k1 import srd
import os

QF = 0
OP = 12288
SCR = OP + 4*8*2560
K2_LDS = SCR + 65536
BIAS = 16.0
ORDER = "e0 c7' S8 e1 e2 c0 e3 e4 c1 S16 e5 e6 c2 e7 e8 PV1 c3 e9 e10 c4 e11 e12 PV0 c5 e13 e14 c6 e15".split()

def gen_k2():
    k = K('k2_attn_kernel')
    WS, SA, SB = 12, 16, 20
    (sWV, sHD, sQB, sT0, sT1, sT2, sKM, sKX, sV, sIT, sQM, sQX, sSRC, sSRC2, sPB, sDST, sDS1, sSC, sKM0, sKX0, sO, sTOK, sD1, sD2, sD3) = range(24, 49)
    mM0, mM1, mX0, mX1, mSL = 50, 52, 54, 64, 66
    sE = [6, 7, 8, 9]; sBS = 10
    vL, vMO, vXO, vVO, vLO, vRA, vRB, vRD, vQR, vQX, vOW, vOW2 = range(1, 13)
    T = 13
    Q0, Q1 = 20, 28
    S = 36
    P = 68
    O = 76
    O2 = 92
    KX = 108
    RP = 140
    R = 156
    Q2 = 204
    O3 = 212
    km = lambda j: ar(4*j, 4)
    vv = lambda j, t: ar(64 + 8*j + 4*t, 4)
    done = k.label('done')
    k('s_cmp_ge_u32 s2, 256')
    k(f's_cbranch_scc1 {done}')
    k.kidx = 1; k.stamp(0); k.stamp(12, True)
    k('s_load_dwordx2 s[4:5], s[0:1], 72')
    k('s_load_dwordx4 s[56:59], s[0:1], 32')
    k('s_load_dwordx2 s[60:61], s[0:1], 48')
    k('s_load_dwordx2 s[62:63], s[0:1], 16')
    k(f'v_lshrrev_b32 v{T}, 6, v0')
    k(f'v_and_b32 v{vL}, 63, v0')
    k(f'v_readfirstlane_b32 s{sWV}, v{T}')
    k(f's_and_b32 s{sT0}, s2, 7')
    k(f's_lshl_b32 s{sT0}, s{sT0}, 2')
    k(f's_bfe_u32 s{sO}, s2, 0x20003')
    k(f's_add_u32 s{sHD}, s{sT0}, s{sO}')
    k(f's_lshr_b32 s{sQB}, s2, 5')
    k(f'v_lshrrev_b32 v{T}, 5, v{vL}')
    k(f'v_and_b32 v{T+1}, 31, v{vL}')
    k(f'v_lshlrev_b32 v{T+2}, 4, v{T+1}')
    k(f'v_lshl_add_u32 v{vMO}, v{T}, 15, v{T+2}')
    k(f'v_lshl_add_u32 v{vXO}, v{T}, 3, v{T+2}')
    k(f'v_lshlrev_b32 v{vLO}, 4, v{vL}')
    k(f's_mul_i32 s{sT0}, s{sHD}, 288')
    k(f'v_add_u32 v{vVO}, s{sT0}, v{T+2}')
    k(f'v_mov_b32 v{T+3}, 9216')
    k(f'v_cmp_eq_u32 vcc, 18, v{T+1}')
    k(f'v_cndmask_b32 v{vVO}, v{vVO}, v{T+3}, vcc')
    k(f'v_mov_b32 v{T+3}, {OOB:#x}')
    k(f'v_cmp_lt_u32 vcc, 18, v{T+1}')
    k(f'v_cndmask_b32 v{vVO}, v{vVO}, v{T+3}, vcc')
    k(f'v_mul_u32_u24 v{T+3}, {VP}, v{T}')
    k(f'v_add_u32 v{vVO}, v{vVO}, v{T+3}')
    k(f's_mul_i32 s{sT0}, s{sHD}, 18')
    k(f's_lshr_b32 s{sT0}, s{sT0}, 3')
    k(f's_cmp_eq_u32 s{sO}, 3')
    k(f's_cselect_b32 s{sT1}, 1, 0')
    k(f's_cselect_b32 s{sT2}, 0, 2')
    k(f's_cselect_b32 s{mSL}, -1, 0')
    k(f's_cselect_b32 s{mSL+1}, 0, -1')
    k(f's_cselect_b32 s{mX0}, 0, -1')
    k(f's_cselect_b32 s{mX1+1}, -1, 0')
    k(f's_add_u32 s{sT1}, s{sT1}, s{sT0}')
    k(f's_add_u32 s{sT2}, s{sT2}, s{sT0}')
    k(f's_lshl_b32 s{sT1}, s{sT1}, 15')
    k(f's_lshl_b32 s{sT2}, s{sT2}, 15')
    k(f's_cmp_eq_u32 s{sO}, 2')
    k(f's_cselect_b32 s{mX0+1}, -1, 0')
    k(f's_cselect_b32 s{mM1}, 0, -1')
    k(f's_sub_u32 s{sT0}, s{sO}, 1')
    k(f's_cmp_lt_u32 s{sT0}, 2')
    k(f's_cselect_b32 s{mM0}, 0, -1')
    k(f's_cselect_b32 s{mX1}, -1, 0')
    k(f's_mov_b32 s{mM0+1}, -1')
    k(f's_mov_b32 s{mM1+1}, -1')
    k(f's_add_u32 s{sKM0}, s{sT1}, {KI:#x}')
    k(f's_add_u32 s{sKX0}, s{sT2}, {KI:#x}')
    k(f's_lshl_b32 s{sT0}, s{sWV}, 13')
    k(f's_add_u32 s{sKM}, s{sKM0}, s{sT0}')
    k(f's_add_u32 s{sKX}, s{sKX0}, s{sT0}')
    k(f's_lshl_b32 s{sTOK}, s{sQB}, 8')
    k(f's_lshl_b32 s{sT0}, s{sWV}, 6')
    k(f's_add_u32 s{sTOK}, s{sTOK}, s{sT0}')
    k(f's_lshl_b32 s{sT0}, s{sTOK}, 4')
    k(f's_add_u32 s{sQM}, s{sT1}, s{sT0}')
    k(f's_add_u32 s{sQX}, s{sT2}, s{sT0}')
    k(f's_mul_i32 s{sV}, s{sWV}, {16*4*VP}')
    k(f's_add_u32 s{sV}, s{sV}, {VT:#x}')
    k('s_waitcnt lgkmcnt(0)')
    k.stamp(7)
    srd(k, WS, 4, WS_END)
    ws = sr(WS, 4)
    def kvload(j):
        out = [f'buffer_load_dwordx4 {km(j)}, v{vMO}, {ws}, s{sKM} offen offset:{512*(j&7)}',
               f'buffer_load_dwordx2 {vr(KX+2*j,2)}, v{vXO}, {ws}, s{sKX} offen offset:{512*(j&7)}',
               f'buffer_load_dwordx4 {vv(j,0)}, v{vVO}, {ws}, s{sV} offen',
               f's_add_u32 s{sV}, s{sV}, {2*VP}',
               f'buffer_load_dwordx4 {vv(j,1)}, v{vVO}, {ws}, s{sV} offen',
               f's_add_u32 s{sV}, s{sV}, {2*VP}']
        if j == 7: out += [f's_add_u32 s{sKM}, s{sKM}, 4096', f's_add_u32 s{sKX}, s{sKX}, 4096']
        return out
    for i in range(2):
        k(f'buffer_load_dwordx4 {vr(R+8*i,4)}, v{vMO}, {ws}, s{sQM} offen offset:{512*i}')
        k(f'buffer_load_dwordx2 {vr(R+8*i+4,2)}, v{vXO}, {ws}, s{sQX} offen offset:{512*i}')
    PF = int(os.environ.get('K2PF', '4'))
    kv = []
    for j in range(16):
        l = kvload(j)
        kv += [(('k', j), l[0:1]), (('k', j), l[1:2]), (('v', j), l[2:4]), (('v', j), l[4:])]
    issued = [('q', 0)]*4
    def iss(n=1):
        out = []
        for _ in range(n):
            if kv:
                t, l = kv.pop(0); out += l; issued.append(t)
        return out
    def younger(tag): return len(issued) - 1 - max(i for i, t in enumerate(issued) if t == tag)
    for l in iss(2): k(l)
    k(f's_lshl_b32 s{sT0}, s2, 2')
    k(f's_add_u32 s{sT0}, s{sT0}, s{sWV}')
    lgu = k.label('gu'); ldn = k.label('dn'); lset = k.label('set'); lset2 = k.label('set2'); lwx = k.label('wx')
    k(f's_lshl_b32 s{sSC}, s{sWV}, 14')
    k(f's_add_u32 s{sSC}, s{sSC}, {SCR}')
    k(f'v_lshrrev_b32 v{T+2}, 3, v{vL}')
    k(f'v_and_b32 v{T+3}, 7, v{vL}')
    k(f'v_bfe_u32 v{T+4}, v{vL}, 2, 2')
    k(f'v_and_b32 v{T+5}, 3, v{vL}')
    k(f'v_lshrrev_b32 v{T+6}, 4, v{vL}')
    k(f'v_lshl_add_u32 v{vRD}, v{T+4}, 7, s{sSC}')
    k(f's_cmp_lt_u32 s{sT0}, 648')
    k(f's_cbranch_scc1 {lgu}')
    k(f'v_lshl_add_u32 v{vRD}, v{T+6}, 10, v{vRD}')
    k(f'v_lshl_add_u32 v{vRD}, v{T+5}, 3, v{vRD}')
    k(f's_cmp_lt_u32 s{sT0}, 972')
    k(f's_cbranch_scc1 {ldn}')
    srd(k, SA, 62, 576*1152); srd(k, SB, 62, 576*1152)
    k(f's_sub_u32 s{sT0}, s{sT0}, 972')
    k(f's_mul_i32 s{sT1}, s{sT0}, 57')
    k(f's_lshr_b32 s{sT1}, s{sT1}, 9')
    k(f's_mul_i32 s{sT2}, s{sT1}, 9')
    k(f's_sub_u32 s{sT2}, s{sT0}, s{sT2}')
    k(f's_mul_i32 s{sDST}, s{sT2}, {4*WOP_T}')
    k(f's_lshl_b32 s{sDS1}, s{sT1}, 12')
    k(f's_add_u32 s{sDST}, s{sDST}, s{sDS1}')
    k(f's_add_u32 s{sDST}, s{sDST}, {WOP:#x}')
    k(f's_mov_b32 s{sDS1}, {WOP_T}')
    k(f's_lshl_b32 s{sSRC}, s{sT2}, 7')
    k(f's_cmp_ge_u32 s{sT1}, 5')
    k(f's_cselect_b32 s{sDST}, {OOB:#x}, s{sDST}')
    k(f's_cmp_eq_u32 s{sT1}, 4')
    k(f's_cbranch_scc1 {lwx}')
    k(f'v_lshrrev_b32 v{vRA}, 2, v{T+2}')
    k(f'v_lshlrev_b32 v{vRA}, 3, v{vRA}')
    k(f'v_and_b32 v{vRB}, 3, v{T+2}')
    k(f'v_add_u32 v{vRA}, v{vRA}, v{vRB}')
    k(f'v_mul_u32_u24 v{vRA}, 1152, v{vRA}')
    k(f'v_lshl_add_u32 v{vRA}, v{T+3}, 4, v{vRA}')
    k(f'v_add_u32 v{vRB}, {4*1152-1024}, v{vRA}')
    k(f's_mul_i32 s{sT1}, s{sT1}, {144*1152}')
    k(f's_add_u32 s{sSRC}, s{sSRC}, s{sT1}')
    k(f's_add_u32 s{sSRC2}, s{sSRC}, {18*1152}')
    k(f's_mov_b32 s{sPB}, {36*1152}')
    k(f's_branch {lset}')
    k(f'{lwx}:')
    k(f'v_lshrrev_b32 v{vRA}, 1, v{T+2}')
    k(f'v_mul_u32_u24 v{vRA}, 18, v{vRA}')
    k(f'v_and_b32 v{vRB}, 1, v{T+2}')
    k(f'v_add3_u32 v{vRA}, v{vRA}, v{vRB}, 16')
    k(f'v_mul_u32_u24 v{vRA}, 1152, v{vRA}')
    k(f'v_lshl_add_u32 v{vRA}, v{T+3}, 4, v{vRA}')
    k(f'v_add_u32 v{vRB}, {72*1152-1024}, v{vRA}')
    k(f's_add_u32 s{sSRC2}, s{sSRC}, {144*1152}')
    k(f's_mov_b32 s{sPB}, {288*1152}')
    k(f's_branch {lset}')
    k(f'{ldn}:')
    srd(k, SA, 60, 4608*1152); srd(k, SB, 60, 4608*1152)
    k(f's_sub_u32 s{sT0}, s{sT0}, 648')
    k(f's_mul_i32 s{sT1}, s{sT0}, 57')
    k(f's_lshr_b32 s{sT1}, s{sT1}, 9')
    k(f's_mul_i32 s{sT2}, s{sT1}, 9')
    k(f's_sub_u32 s{sT2}, s{sT0}, s{sT2}')
    k(f's_mul_i32 s{sDST}, s{sT1}, {4*9216}')
    k(f's_add_u32 s{sDST}, s{sDST}, {WD:#x}')
    k(f's_mov_b32 s{sBS}, 9216')
    for cc in range(4):
        k(f's_lshl_b32 s{sE[cc]}, s{sT2}, 2')
        k(f's_add_u32 s{sE[cc]}, s{sE[cc]}, {cc}')
        k(f's_mul_i32 s{sDS1}, s{sE[cc]}, 57')
        k(f's_lshr_b32 s{sDS1}, s{sDS1}, 9')
        k(f's_mul_i32 s{sDS1}, s{sDS1}, {144*9216 - 9*1024}')
        k(f's_lshl_b32 s{sE[cc]}, s{sE[cc]}, 10')
        k(f's_add_u32 s{sE[cc]}, s{sE[cc]}, s{sDS1}')
    k(f's_lshl_b32 s{sSRC}, s{sT2}, 7')
    k(f's_mul_i32 s{sT1}, s{sT1}, {128*1152}')
    k(f's_add_u32 s{sSRC}, s{sSRC}, s{sT1}')
    k(f'v_mul_u32_u24 v{vRA}, 1152, v{T+2}')
    k(f'v_lshl_add_u32 v{vRA}, v{T+3}, 4, v{vRA}')
    k(f'v_add_u32 v{vRB}, {8*1152-1024}, v{vRA}')
    k(f's_add_u32 s{sSRC2}, s{sSRC}, {16*1152}')
    k(f's_mov_b32 s{sPB}, {32*1152}')
    k(f's_branch {lset2}')
    k(f'{lgu}:')
    srd(k, SA, 56, 576*9216); srd(k, SB, 58, 576*9216)
    k(f's_mul_i32 s{sT1}, s{sT0}, 14564')
    k(f's_lshr_b32 s{sT1}, s{sT1}, 20')
    k(f's_mul_i32 s{sT2}, s{sT1}, 72')
    k(f's_sub_u32 s{sT2}, s{sT0}, s{sT2}')
    k(f's_mul_i32 s{sDST}, s{sT2}, {4*36*1024}')
    k(f's_lshl_b32 s{sDS1}, s{sT1}, 12')
    k(f's_add_u32 s{sDST}, s{sDST}, s{sDS1}')
    k(f's_add_u32 s{sDST}, s{sDST}, {WGU:#x}')
    k(f's_mov_b32 s{sDS1}, {36*1024}')
    k(f's_lshl_b32 s{sSRC}, s{sT2}, 7')
    k(f's_mul_i32 s{sT1}, s{sT1}, {64*9216}')
    k(f's_add_u32 s{sSRC}, s{sSRC}, s{sT1}')
    k(f's_mov_b32 s{sSRC2}, s{sSRC}')
    k(f'v_mul_u32_u24 v{vRA}, 9216, v{T+2}')
    k(f'v_lshl_add_u32 v{vRA}, v{T+3}, 4, v{vRA}')
    k(f'v_add_u32 v{vRB}, {8*9216-1024}, v{vRA}')
    k(f's_mov_b32 s{sPB}, {16*9216}')
    k(f'v_and_b32 v{T+4}, 1, v{T+6}')
    k(f'v_lshl_add_u32 v{vRD}, v{T+4}, 11, v{vRD}')
    k(f'v_lshrrev_b32 v{T+4}, 1, v{T+6}')
    k(f'v_lshl_add_u32 v{vRD}, v{T+4}, 10, v{vRD}')
    k(f'v_and_b32 v{T+4}, 1, v{T+5}')
    k(f'v_lshl_add_u32 v{vRD}, v{T+4}, 4, v{vRD}')
    k(f'v_lshrrev_b32 v{T+4}, 1, v{T+5}')
    k(f'v_lshl_add_u32 v{vRD}, v{T+4}, 3, v{vRD}')
    k(f'{lset}:')
    k(f's_mov_b32 s{sBS}, 1024')
    k(f's_mov_b32 s{sE[0]}, 0')
    for cc in range(1, 4): k(f's_add_u32 s{sE[cc]}, s{sE[cc-1]}, s{sDS1}')
    k(f'{lset2}:')
    k(f'v_mov_b32 v{vQR}, v{vLO}')
    k(f'v_lshlrev_b32 v{vQX}, 3, v{vL}')
    k(f's_mul_i32 s{sT0}, s{sWV}, {8*2560}')
    k(f's_add_u32 s{sT0}, s{sT0}, {OP}')
    k(f'v_add_u32 v{vOW}, s{sT0}, v{vLO}')
    k(f's_mul_i32 s{sT0}, s{sWV}, 3072')
    k(f'v_add_u32 v{T+2}, s{sT0}, v{vQR}')
    k(f'v_add_u32 v{T+3}, s{sT0}, v{vQX}')
    k(f'v_mov_b32 v{T+4}, 0x3f80')
    patch = lambda j: f'v_cndmask_b32 v{KX+2*j+1}, v{KX+2*j+1}, v{T+4}, {sr(mSL,2)}'
    for l in iss(6): k(l)
    k(f's_waitcnt vmcnt({younger(("k",0))})')
    k.stamp(1)
    for i in range(2):
        q = R + 8*i
        k(f'v_cndmask_b32 v{q}, 0, v{q}, {sr(mM0,2)}')
        k(f'v_cndmask_b32 v{q+1}, 0, v{q+1}, {sr(mM1,2)}')
        k(f'v_cndmask_b32 v{q+4}, 0, v{q+4}, {sr(mX0,2)}')
        k(f'v_cndmask_b32 v{q+5}, 0, v{q+5}, {sr(mX1,2)}')
    k(patch(0))
    for i in range(2):
        q = R + 8*i; s = S + 16*i
        k(f'v_mfma_f32_32x32x8_bf16 {vr(s,16)}, {vr(KX,2)}, {vr(q+4,2)}, 0')
    for i in range(2):
        q = R + 8*i; s = S + 16*i
        k(f'v_mfma_f32_32x32x16_bf16 {vr(s,16)}, {km(0)}, {vr(q,4)}, {vr(s,16)}')
        k(f'ds_write_b128 v{T+2}, {vr(q,4)} offset:{1536*i}')
        for l in iss(2): k(l)
    for i in range(2):
        q = R + 8*i; s = S + 16*i
        k(f'v_max3_f32 v{s}, v{s}, v{s+1}, v{s+2}')
        k(f'v_max3_f32 v{s+3}, v{s+3}, v{s+4}, v{s+5}')
        k(f'v_max3_f32 v{s+6}, v{s+6}, v{s+7}, v{s+8}')
        k(f'v_max3_f32 v{s}, v{s}, v{s+3}, v{s+6}')
        k(f'v_sub_f32 v{s}, {f32bits(-BIAS):#x}, v{s}')
        k(f'v_cvt_pk_bf16_f32 v{s}, v{s}, 0')
        k(f'v_cndmask_b32 v{q+5}, v{q+5}, v{s}, {sr(mSL,2)}')
        k(f'ds_write_b64 v{T+3}, {vr(q+4,2)} offset:{1536*i+1024}')
    k('s_waitcnt lgkmcnt(0)')
    k('s_barrier')
    def qread(dst, off): return [f'ds_read_b128 {vr(dst,4)}, v{vQR} offset:{off}', f'ds_read_b64 {vr(dst+4,2)}, v{vQX} offset:{off+1024}']
    for l in qread(Q2, 0) + qread(Q1, 1536): k(l)
    for l in iss(4*PF - 12): k(l)
    k('s_waitcnt lgkmcnt(2)')
    k(f'v_mfma_f32_32x32x8_bf16 {vr(S,16)}, {vr(KX,2)}, {vr(Q2+4,2)}, 0')
    k(f'v_mfma_f32_32x32x16_bf16 {vr(S,16)}, {km(0)}, {vr(Q2,4)}, {vr(S,16)}')
    k(f'v_add_u32 v{vQR}, 1536, v{vQR}')
    k(f'v_add_u32 v{vQX}, 1536, v{vQX}')
    k.stamp(2)
    def owrite(off0, O=O):
        return [f'ds_write_b128 v{vOW}, {vr(O,4)} offset:{off0}', f'ds_write_b128 v{vOW}, {vr(O+4,4)} offset:{off0+1024}',
                's_mov_b32 exec_hi, 0', f'ds_write_b128 v{vOW}, {vr(O+8,4)} offset:{off0+2048}', 's_mov_b32 exec_hi, -1']
    NORP = os.environ.get('NORP')
    def dma_ops(i):
        pre = [f's_add_u32 m0, s{sSC}, {1024*i}'] if i & 1 == 0 else []
        l = [f'buffer_load_dwordx4 v{vRB if i&1 else vRA}, {sr(SA if i < 2 else SB,4)}, s{sSRC if i < 2 else sSRC2} offen offset:{1024*(i&1)} lds']
        if i == 3: l += [f's_add_u32 s{sSRC}, s{sSRC}, s{sPB}', f's_add_u32 s{sSRC2}, s{sSRC2}, s{sPB}', f's_add_u32 s{sSC}, s{sSC}, 4096']
        return pre, l
    def body(mode):
        first = mode == 'first'
        NU = 32 if first else 16
        def tile(u): return (u >> 1 if first else u) if u < NU else 0
        def qreg(u):
            if u >= NU: return Q0
            return (Q1 if u & 1 else Q2) if first else Q1
        for u in range(NU):
            s_ = S + 16*(u&1); s2 = S + 16*((u+1)&1)
            hooks = {}; pre = {}
            def after(tok, l): hooks.setdefault(tok, []).extend(l)
            def before(tok, l): pre.setdefault(tok, []).extend(l)
            if first:
                if u & 1 and u < 31:
                    before('S8', [f's_waitcnt vmcnt({younger(("k", tile(u+1)))})', patch(tile(u+1))])
                after('e1', iss(1))
                if not u & 1:
                    before('PV0', [f's_waitcnt vmcnt({younger(("v", tile(u)))})'])
                after('e13', iss(1))
                if not kv and u >= 24 and u & 1 and not NORP:
                    p_, l_ = dma_ops((u - 24) >> 1)
                    before('c6', p_); after('c6', l_); issued.append(('d', 0))
            if u == 1 and not first:
                after('e0', owrite(0)[:1]); after('e2', owrite(0)[1:2]); after('e4', owrite(0)[2:])
                after('e6', [f'v_add_u32 v{vOW}, 2560, v{vOW}'])
                before('PV0', ['s_waitcnt lgkmcnt(0)'])
            if u == 3: after('e1', qread(Q0, 1536))
            if u == NU - 1:
                before('S8', ['s_waitcnt lgkmcnt(0)'])
                after('e1', qread(Q1, 1536))
                after('e5', [f'v_add_u32 v{vQR}, 1536, v{vQR}', f'v_add_u32 v{vQX}, 1536, v{vQX}'])
            if u == 0: before('S8', ['s_waitcnt lgkmcnt(0)'])
            if mode == 'dma' and u in (2, 6, 10, 14) and not NORP:
                p_, l_ = dma_ops((2, 6, 10, 14).index(u))
                before('e9', p_); after('e9', l_)
            if mode == 'out' and not NORP:
                if u == 2: before('e3', ['s_waitcnt vmcnt(12)'])
                if 2 <= u < 6:
                    cc = u - 2
                    after('e3', [f'ds_read_b64_tr_b16 {vr(RP+4*cc,2)}, v{vRD} offset:{32*cc}'])
                    after('e9', [f'ds_read_b64_tr_b16 {vr(RP+4*cc+2,2)}, v{vRD} offset:{32*cc+512}'])
                if u in (7, 9, 11, 13):
                    cc = (u - 7) // 2
                    if cc == 0: before('e9', ['s_waitcnt lgkmcnt(0)', f'v_add_u32 v{vRD}, 4096, v{vRD}'])
                    before('e9', [f's_add_u32 s{sDS1}, s{sDST}, s{sE[cc]}'])
                    after('e9', [f'buffer_store_dwordx4 {vr(RP+4*cc,4)}, v{vLO}, {ws}, s{sDS1} offen sc1'])
                    if cc == 3: after('e9', [f's_add_u32 s{sDST}, s{sDST}, s{sBS}'])
            for tok in ORDER:
                for l in pre.get(tok, []): k(l)
                if tok[0] == 'e': i = int(tok[1:]); k(f'v_exp_f32 v{s_+i}, v{s_+i}')
                elif tok == "c7'":
                    if not (first and u == 0): k(f'v_cvt_pk_bf16_f32 v{P+7}, v{s2+14}, v{s2+15}')
                elif tok[0] == 'c': i = int(tok[1:]); k(f'v_cvt_pk_bf16_f32 v{P+i}, v{s_+2*i}, v{s_+2*i+1}')
                elif tok == 'PV1':
                    if first:
                        if u:
                            o = O3 if u & 1 else O
                            k(f'v_mfma_f32_32x32x16_bf16 {vr(o,16)}, {vv(tile(u-1),1)}, {vr(P+4,4)}, {vr(o,16)}')
                    else:
                        o = O2 if u == 1 else O
                        k(f'v_mfma_f32_32x32x16_bf16 {vr(o,16)}, {vv((u-1)&15,1)}, {vr(P+4,4)}, {vr(o,16)}')
                elif tok == 'PV0':
                    if first:
                        d = O if u & 1 else O3
                        c = '0' if u < 2 else vr(d,16)
                    else:
                        d = O2 if u == 0 else O
                        c = '0' if u == 0 else (vr(O2,16) if u == 1 else vr(O,16))
                    k(f'v_mfma_f32_32x32x16_bf16 {vr(d,16)}, {vv(tile(u),0)}, {vr(P,4)}, {c}')
                elif tok == 'S8': k(f'v_mfma_f32_32x32x8_bf16 {vr(s2,16)}, {vr(KX+2*tile(u+1),2)}, {vr(qreg(u+1)+4,2)}, 0')
                elif tok == 'S16': k(f'v_mfma_f32_32x32x16_bf16 {vr(s2,16)}, {km(tile(u+1))}, {vr(qreg(u+1),4)}, {vr(s2,16)}')
                for l in hooks.get(tok, []): k(l)
        if first:
            assert not kv and (NORP or issued.count(('d', 0)) == 4), issued.count(('d', 0))
            for l in owrite(0, O3): k(l)
            k(f'v_add_u32 v{vOW}, 2560, v{vOW}')
    def loop(mode, n):
        lp = k.label('loop')
        k(f's_mov_b32 s{sIT}, {n}')
        k(f'{lp}:')
        body(mode)
        k(f's_sub_u32 s{sIT}, s{sIT}, 1')
        k(f's_cmp_lg_u32 s{sIT}, 0')
        k(f's_cbranch_scc1 {lp}')
    body('first')
    k.stamp(3)
    loop('dma', 3)
    k.stamp(8)
    k.code_prefetch('k3_wo_kernel', 'k5_down_kernel', 56, Q2, Q2+1, sWV, sT0)
    loop('out', 3)
    k.stamp(4)
    k('s_waitcnt vmcnt(12)')
    for cc in range(4):
        for rd in range(2): k(f'ds_read_b64_tr_b16 {vr(RP+4*cc+2*rd,2)}, v{vRD} offset:{32*cc+512*rd}')
    k(f'v_cvt_pk_bf16_f32 v{P+7}, v{S+16+14}, v{S+16+15}')
    k(f'v_mfma_f32_32x32x16_bf16 {vr(O,16)}, {vv(15,1)}, {vr(P+4,4)}, {vr(O,16)}')
    k(f's_mul_i32 s{sT0}, s{sWV}, 5120')
    k(f's_add_u32 s{sT0}, s{sT0}, {OP}')
    k(f'v_add_u32 v{T}, s{sT0}, v{vLO}')
    k(f'v_and_b32 v{T+1}, 511, v{vLO}')
    k(f'v_add_u32 v{T+1}, s{sT0}, v{T+1}')
    k(f'v_bfe_u32 v{T+2}, v{vL}, 4, 1')
    k(f'v_mul_u32_u24 v{T+2}, {18*1024}, v{T+2}')
    k(f'v_and_b32 v{T+3}, 15, v{vL}')
    k(f'v_lshl_add_u32 v{T+2}, v{T+3}, 4, v{T+2}')
    k(f'v_lshrrev_b32 v{T+3}, 5, v{vL}')
    k(f'v_lshl_add_u32 v{T+3}, v{T+3}, 8, v{T+2}')
    k(f's_lshr_b32 s{sT0}, s{sTOK}, 4')
    k(f's_mul_i32 s{sT0}, s{sT0}, {18*1024}')
    k(f's_add_u32 s{sT0}, s{sT0}, {OI:#x}')
    k(f's_lshl_b32 s{sD1}, s{sHD}, 9')
    k(f's_add_u32 s{sD1}, s{sD1}, s{sT0}')
    k(f's_lshr_b32 s{sD2}, s{sHD}, 2')
    k(f's_lshl_b32 s{sD2}, s{sD2}, 8')
    k(f's_lshl_b32 s{sT2}, s{sO}, 2')
    k(f's_add_u32 s{sD2}, s{sD2}, s{sT2}')
    k(f's_add_u32 s{sD2}, s{sD2}, s{sT0}')
    k(f's_add_u32 s{sD2}, s{sD2}, {16*1024}')
    for l in owrite(0): k(l)
    k(f's_mov_b32 s{sIT}, 2')
    k('s_waitcnt lgkmcnt(3)')
    for cc in range(4):
        k(f's_add_u32 s{sDS1}, s{sDST}, s{sE[cc]}')
        k(f'buffer_store_dwordx4 {vr(RP+4*cc,4)}, v{vLO}, {ws}, s{sDS1} offen sc1')
    k('s_waitcnt lgkmcnt(0)')
    k('s_barrier')
    k.stamp(5)
    red = k.label('red'); slow = k.label('slow'); fin = k.label('fin')
    k(f'{red}:')
    for src in range(4):
        k(f'ds_read_b128 {vr(R+12*src,4)}, v{T} offset:{src*20480}')
        k(f'ds_read_b128 {vr(R+12*src+4,4)}, v{T} offset:{src*20480+1024}')
        k(f'ds_read_b128 {vr(R+12*src+8,4)}, v{T+1} offset:{src*20480+2048}')
    k(f'v_add_u32 v{T}, 2560, v{T}')
    k(f'v_add_u32 v{T+1}, 2560, v{T+1}')
    k('s_waitcnt lgkmcnt(6)')
    for i in range(0, 12, 2): k(f'v_pk_add_f32 {vr(R+i,2)}, {vr(R+i,2)}, {vr(R+12+i,2)}')
    k('s_waitcnt lgkmcnt(0)')
    for i in range(0, 12, 2): k(f'v_pk_add_f32 {vr(R+24+i,2)}, {vr(R+24+i,2)}, {vr(R+36+i,2)}')
    for i in range(0, 12, 2): k(f'v_pk_add_f32 {vr(R+i,2)}, {vr(R+i,2)}, {vr(R+24+i,2)}')
    k(f'v_pk_add_f32 {vr(R+12,2)}, {vr(R,2)}, {vr(R+2,2)}')
    k(f'v_pk_add_f32 {vr(R+14,2)}, {vr(R+4,2)}, {vr(R+6,2)}')
    k(f'v_pk_add_f32 {vr(R+12,2)}, {vr(R+12,2)}, {vr(R+8,2)}')
    k(f'v_pk_add_f32 {vr(R+12,2)}, {vr(R+12,2)}, {vr(R+14,2)}')
    k(f'v_add_f32 v{R+12}, v{R+12}, v{R+13}')
    k(f'v_mov_b32 v{R+13}, 0x1f8')
    k(f'v_cmp_class_f32 s[68:69], v{R+12}, v{R+13}')
    k(f'v_cmp_le_f32 vcc, {f32bits(2.0**-24):#x}, v{R+10}')
    k(f's_and_b64 s[68:69], s[68:69], vcc')
    k(f'v_cmp_ge_f32 vcc, {f32bits(2.0**90):#x}, v{R+10}')
    k(f's_and_b64 s[68:69], s[68:69], vcc')
    k(f's_cmp_eq_u64 s[68:69], -1')
    k(f's_cbranch_scc0 {slow}')
    k(f'{fin}:')
    k(f'v_rcp_f32 v{R+10}, v{R+10}')
    for i in range(0, 10, 2): k(f'v_pk_mul_f32 {vr(R+i,2)}, {vr(R+i,2)}, {vr(R+10,2)} op_sel_hi:[1,0]')
    for i in range(5): k(f'v_cvt_pk_bf16_f32 v{R+16+i}, v{R+2*i}, v{R+2*i+1}')
    k(f'buffer_store_dwordx4 {vr(R+16,4)}, v{T+3}, {ws}, s{sD1} offen sc1')
    k('s_mov_b32 exec_hi, 0')
    k(f'buffer_store_dword v{R+20}, v{T+2}, {ws}, s{sD2} offen')
    k('s_mov_b32 exec_hi, -1')
    k(f's_add_u32 s{sD1}, s{sD1}, {36*1024}')
    k(f's_add_u32 s{sD2}, s{sD2}, {36*1024}')
    k(f's_sub_u32 s{sIT}, s{sIT}, 1')
    k(f's_cmp_lg_u32 s{sIT}, 0')
    k(f's_cbranch_scc1 {red}')
    k('s_waitcnt vmcnt(0)') if K.prof else None
    k.stamp(6); k.stamp(13, True); k.stamp_flush(ws, sWV)
    k(f'{done}:')
    k('s_endpgm')
    k(f'{slow}:')
    k(f's_lshl_b32 s{sT0}, s{sWV}, 1')
    k(f's_add_u32 s{sT0}, s{sT0}, 2')
    k(f's_sub_u32 s{sT0}, s{sT0}, s{sIT}')
    k(f's_mul_i32 s{sT0}, s{sT0}, 1536')
    k(f'v_add_u32 v{vQR}, s{sT0}, v{vLO}')
    k(f'v_lshl_add_u32 v{vQX}, v{vL}, 3, s{sT0}')
    for l in qread(Q1, 0): k(l)
    k(f'v_mov_b32 v{T+5}, 0xff800000')
    k('s_waitcnt lgkmcnt(0)')
    k(f'v_cndmask_b32 v{Q1+5}, v{Q1+5}, 0, {sr(mSL,2)}')
    for i in range(16): k(f'v_mov_b32 v{O+i}, 0')
    for ps in range(2):
        lp = k.label('sl')
        k(f's_mov_b32 s{sKM}, s{sKM0}')
        k(f's_mov_b32 s{sKX}, s{sKX0}')
        k(f's_mov_b32 s{sV}, {VT:#x}')
        k(f's_mov_b32 s{sT1}, 64')
        k(f'{lp}:')
        k(f'buffer_load_dwordx4 {km(0)}, v{vMO}, {ws}, s{sKM} offen')
        k(f'buffer_load_dwordx2 {vr(KX,2)}, v{vXO}, {ws}, s{sKX} offen')
        if ps:
            k(f'buffer_load_dwordx4 {vv(0,0)}, v{vVO}, {ws}, s{sV} offen')
            k(f's_add_u32 s{sV}, s{sV}, {2*VP}')
            k(f'buffer_load_dwordx4 {vv(0,1)}, v{vVO}, {ws}, s{sV} offen')
            k(f's_add_u32 s{sV}, s{sV}, {2*VP}')
        k('s_waitcnt vmcnt(0)')
        k(f'v_mfma_f32_32x32x8_bf16 {vr(S,16)}, {vr(KX,2)}, {vr(Q1+4,2)}, 0')
        k(f'v_mfma_f32_32x32x16_bf16 {vr(S,16)}, {km(0)}, {vr(Q1,4)}, {vr(S,16)}')
        if ps == 0:
            for i in range(8): k(f'v_max3_f32 v{T+5}, v{T+5}, v{S+2*i}, v{S+2*i+1}')
        else:
            for i in range(16): k(f'v_sub_f32 v{S+i}, v{S+i}, v{T+5}')
            for i in range(16): k(f'v_exp_f32 v{S+i}, v{S+i}')
            for i in range(8): k(f'v_cvt_pk_bf16_f32 v{P+i}, v{S+2*i}, v{S+2*i+1}')
            k(f'v_mfma_f32_32x32x16_bf16 {vr(O,16)}, {vv(0,0)}, {vr(P,4)}, {vr(O,16)}')
            k(f'v_mfma_f32_32x32x16_bf16 {vr(O,16)}, {vv(0,1)}, {vr(P+4,4)}, {vr(O,16)}')
        k(f's_add_u32 s{sKM}, s{sKM}, 512')
        k(f's_add_u32 s{sKX}, s{sKX}, 512')
        k(f's_sub_u32 s{sT1}, s{sT1}, 1')
        k(f's_cmp_lg_u32 s{sT1}, 0')
        k(f's_cbranch_scc1 {lp}')
        if ps == 0:
            k(f'v_mov_b32 v{T+6}, v{T+5}')
            k(f'v_permlane32_swap_b32 v{T+5}, v{T+6}')
            k(f'v_max_f32 v{T+5}, v{T+5}, v{T+6}')
    for i in range(11): k(f'v_mov_b32 v{R+i}, v{O+i}')
    k(f'v_mov_b32 v{R+11}, v{O+10}')
    k(f'v_permlane32_swap_b32 v{R+10}, v{R+11}')
    k(f's_branch {fin}')
    return k.finish(vgpr=228+192, accum=228), (256, 256, K2_LDS)
```

```python
from asmlib import *
from layout import *
from k1 import srd
import math, os

CH = 36 * 1024
K4_LDS = 4 * CH

def gen_k4():
    k = K('k4_gateup_kernel')
    WS = 12
    (sWV, sTB, sFS, sT0, sT1, sW, sM0, sHB, sHB2, sACT, sACT2, sIT, sRD, sF0, sF1, sF2, sFM, sPF, sPF2) = range(24, 43)
    vL, vLO, vRD, vRN, vST, T = 1, 2, 3, 4, 5, 6
    C1, VV = 8, 10
    vR1, vR2 = 12, 13
    WF = 16
    E = 40
    HV = 72
    ACC = 104
    done = k.label('done')
    def hb(ks, tt):
        i = 2*ks + tt
        return ar(4*i, 4) if i < 64 else vr(HV + 4*(i-64), 4)
    k('s_cmp_ge_u32 s2, 256')
    k(f's_cbranch_scc1 {done}')
    k.kidx = 3; k.stamp(0); k.stamp(12, True)
    k('s_load_dwordx2 s[4:5], s[0:1], 72')
    k(f'v_lshrrev_b32 v{T}, 6, v0')
    k(f'v_and_b32 v{vL}, 63, v0')
    k(f'v_readfirstlane_b32 s{sWV}, v{T}')
    k(f's_and_b32 s{sTB}, s2, 4')
    k(f's_bfe_u32 s{sT0}, s2, 0x20003')
    k(f's_add_u32 s{sTB}, s{sTB}, s{sT0}')
    k(f's_and_b32 s{sFS}, s2, 3')
    k(f's_lshl_b32 s{sFS}, s{sFS}, 3')
    k(f's_lshr_b32 s{sT0}, s2, 5')
    k(f's_add_u32 s{sFS}, s{sFS}, s{sT0}')
    k(f'v_lshlrev_b32 v{vLO}, 4, v{vL}')
    k(f's_mul_i32 s{sW}, s{sFS}, {9*CH}')
    k(f's_add_u32 s{sW}, s{sW}, {WGU:#x}')
    k(f's_lshl_b32 s{sFM}, s{sWV}, 10')
    k(f's_add_u32 s{sF0}, s{sW}, s{sFM}')
    k(f's_add_u32 s{sF1}, s{sF0}, {CH}')
    k(f's_add_u32 s{sF2}, s{sF0}, {2*CH}')
    k(f's_mul_i32 s{sM0}, s{sWV}, {9*1024}')
    k(f's_add_u32 s{sW}, s{sW}, s{sM0}')
    k(f's_add_u32 s{sW}, s{sW}, {3*CH}')
    k(f's_add_u32 s{sM0}, s{sM0}, {3*CH}')
    k(f's_lshl_b32 s{sT0}, s{sTB}, 3')
    k(f's_lshl_b32 s{sT1}, s{sWV}, 1')
    k(f's_add_u32 s{sT0}, s{sT0}, s{sT1}')
    k(f's_mul_i32 s{sHB}, s{sT0}, {CH}')
    k(f's_add_u32 s{sHB}, s{sHB}, {HB:#x}')
    k(f's_add_u32 s{sHB2}, s{sHB}, {CH}')
    k(f's_mul_i32 s{sACT}, s{sT0}, {2*147456}')
    k(f's_mul_i32 s{sT1}, s{sFS}, {9*512}')
    k(f's_add_u32 s{sACT}, s{sACT}, s{sT1}')
    k(f's_add_u32 s{sACT}, s{sACT}, {ACT:#x}')
    k(f's_add_u32 s{sACT2}, s{sACT}, {2*147456}')
    k(f's_lshl_b32 s{sT0}, s{sT0}, 10')
    k(f's_add_u32 s{sT0}, s{sT0}, {SS:#x}')
    k(f'v_and_b32 v{T}, 31, v{vL}')
    k(f'v_lshlrev_b32 v{T}, 5, v{T}')
    k(f'v_lshrrev_b32 v{T+1}, 5, v{vL}')
    k(f'v_lshl_add_u32 v{T}, v{T+1}, 4, v{T}')
    PFSRC = os.environ.get('K4PF', 'wd')
    k(f's_lshr_b32 s{sPF}, s2, 3')
    k(f's_mul_i32 s{sT1}, s{sPF}, 57')
    k(f's_lshr_b32 s{sT1}, s{sT1}, 9')
    k(f's_mul_i32 s{sT1}, s{sT1}, {36*CH - 9*CH}')
    k(f's_mul_i32 s{sPF}, s{sPF}, {CH}')
    k(f's_add_u32 s{sPF}, s{sPF}, s{sT1}')
    k(f's_and_b32 s{sT1}, s2, 3')
    k(f's_mul_i32 s{sT1}, s{sT1}, {9*CH}')
    k(f's_add_u32 s{sPF}, s{sPF}, s{sT1}')
    k(f's_mul_i32 s{sT1}, s{sWV}, {9*1024}')
    k(f's_add_u32 s{sPF}, s{sPF}, s{sT1}')
    k(f's_add_u32 s{sPF}, s{sPF}, {WD:#x}')
    k(f's_add_u32 s{sPF2}, s{sPF}, {4*CH}')
    k(f's_cmp_lt_u32 s2, {28*8}')
    k(f's_cselect_b32 s{sPF2}, {OOB:#x}, s{sPF2}')
    if PFSRC == 'none': k(f's_mov_b32 s{sPF2}, {OOB:#x}')
    if PFSRC == 'none': k(f's_mov_b32 s{sPF}, {OOB:#x}')
    k('s_waitcnt lgkmcnt(0)')
    k.stamp(7)
    srd(k, WS, 4, WS_END)
    ws = sr(WS, 4)
    def dma_list(last=False):
        out = []
        for i in range(9):
            pre = []
            if i % 4 == 0:
                pre.append(f's_add_u32 m0, s{sM0}, {1024*i}')
                pre.append(f's_add_u32 s{sT1}, s{sW}, {1024*i}')
            out.append(pre + [f'buffer_load_dwordx4 v{vLO}, {ws}, s{sT1} offen offset:{1024*(i%4)} lds'])
        out[-1] += [f's_add_u32 s{sW}, s{sW}, {CH}',
                    f's_add_u32 s{sM0}, s{sM0}, {CH}',
                    f's_cmp_ge_u32 s{sM0}, {4*CH}',
                    f's_cselect_b32 s{sT1}, {4*CH}, 0',
                    f's_sub_u32 s{sM0}, s{sM0}, s{sT1}']
        if last: out[-1] += [f's_mov_b32 s{sW}, s{sPF}']
        return out
    def stage_loads(s):
        out = []
        for c, sf in enumerate((sF0, sF1, sF2)):
            out.append([f's_add_u32 m0, s{sFM}, {c*CH + 4096*s}', f's_nop 0',
                        f'buffer_load_dwordx4 v{vLO}, {ws}, s{sf} offen lds', f's_add_u32 s{sf}, s{sf}, 4096'])
        for j in range(4):
            ks = 4*s + j
            out.append([f'buffer_load_dwordx4 {hb(ks,0)}, v{vLO}, {ws}, s{sHB} offen offset:{1024*j}'])
            out.append([f'buffer_load_dwordx4 {hb(ks,1)}, v{vLO}, {ws}, s{sHB2} offen offset:{1024*j}'])
        out[-1] += [f's_add_u32 s{sHB}, s{sHB}, 4096', f's_add_u32 s{sHB2}, s{sHB2}, 4096']
        return out
    def emit(groups):
        for g in groups:
            for l in g: k(l)
    LEAD = int(os.environ.get('K4LEAD', '2'))
    emit(stage_loads(0))
    for tt in range(2):
        k(f'buffer_load_dwordx4 {vr(E+4*tt,4)}, v{T}, {ws}, s{sT0} offen offset:{1024*tt}')
    for s in range(1, LEAD): emit(stage_loads(s))
    k(f'v_bfe_u32 v{vST}, v{vL}, 4, 1')
    k(f'v_mul_u32_u24 v{vST}, 147456, v{vST}')
    k(f'v_lshl_add_u32 v{vST}, v{T+1}, 8, v{vST}')
    k(f'v_and_b32 v{T+1}, 15, v{vL}')
    k(f'v_lshl_add_u32 v{vST}, v{T+1}, 4, v{vST}')
    k(f'v_add_u32 v{vR1}, {CH}, v{vLO}')
    k(f'v_add_u32 v{vR2}, {2*CH}, v{vLO}')
    k(f'v_add_u32 v{vRN}, {3*CH}, v{vLO}')
    k(f's_mov_b32 s{sRD}, 0')
    k(f's_waitcnt vmcnt({8 + 2 + 11*(LEAD-1)})')
    k('s_barrier')
    k.stamp(1)
    def frd(ks, c):
        return f'ds_read_b128 {vr(WF+4*(3*(ks&1)+c),4)}, v{(vLO,vR1,vR2)[c]} offset:{1024*ks}'
    PD = 3
    def rd(ks):
        if ks < 36: return f'ds_read_b128 {vr(WF+4*(ks%4),4)}, v{vRD} offset:{1024*ks}'
        return f'ds_read_b128 {vr(WF+4*(ks%4),4)}, v{vRN} offset:{1024*(ks-36)}'
    for c in range(3): k(frd(0, c))
    issued = []
    def tags(s): return [('d', s)]*3 + [('h', 4*s + j//2) for j in range(8)]
    issued += tags(0) + [('s', 0)]*2
    for s in range(1, LEAD): issued += tags(s)
    def younger(pred):
        idx = max(i for i, t in enumerate(issued) if pred(t))
        return len(issued) - 1 - idx
    for s in range(9):
        q = []; qt = []
        if s + LEAD < 9: q = stage_loads(s + LEAD); qt = tags(s + LEAD)
        elif s + LEAD == 9: q = dma_list(); qt = [('c3', 0)]*9
        slot = 0
        for j in range(4):
            ks = 4*s + j
            n = younger(lambda t: t == ('h', ks))
            if j == 3 and s < 8:
                n = min(n, younger(lambda t: t == ('d', s + 1)))
                k(f's_waitcnt vmcnt({n}) lgkmcnt(0)')
                k('s_barrier')
            elif j == 3:
                k(f's_waitcnt vmcnt(0) lgkmcnt(0)')
                k('s_barrier')
            else:
                k(f's_waitcnt vmcnt({n}) lgkmcnt(0)')
            for c in range(3):
                for tt in range(2):
                    a = ACC + 32*c + 16*tt
                    k(f'v_mfma_f32_32x32x16_bf16 {vr(a,16)}, {vr(WF+4*(3*(ks&1)+c),4)}, {hb(ks,tt)}, {vr(a,16) if ks else 0}')
                    if tt == 0:
                        if ks < 35: k(frd(ks + 1, c))
                        else: k(rd(36 + c))
                    elif q and slot < len(q):
                        for l in q[slot]: k(l)
                        issued.append(qt[slot]); slot += 1
            if ks == 5:
                for tt in range(2):
                    e = E + 4*tt
                    k(f'v_add_f32 v{e}, v{e}, v{e+1}')
                    k(f'v_add_f32 v{e+2}, v{e+2}, v{e+3}')
                    k(f'v_add_f32 v{e}, v{e}, v{e+2}')
                    k(f'v_mov_b32 v{e+1}, v{e}')
                    k(f'v_mov_b32 v{VV+tt}, {f32bits(1e-5):#x}')
                    k(f'v_permlane32_swap_b32 v{e}, v{e+1}')
                    k(f'v_add_f32 v{e}, v{e}, v{e+1}')
                    k(f'v_fmac_f32 v{VV+tt}, {f32bits(1/576):#x}, v{e}')
                    k(f'v_rsq_f32 v{C1+tt}, v{VV+tt}')
                    k(f'v_mul_f32 v{C1+tt}, {f32bits(-math.log2(math.e)):#x}, v{C1+tt}')
        assert slot == len(q)
    def nextaddr():
        k(f'v_mov_b32 v{vRD}, v{vRN}')
        k(f'v_add_u32 v{vRN}, s{sRD}, v{vLO}')
        k(f's_add_u32 s{sRD}, s{sRD}, {CH}')
        k(f's_cmp_ge_u32 s{sRD}, {4*CH}')
        k(f's_cselect_b32 s{sRD}, 0, s{sRD}')
    nextaddr()
    k.stamp(2)
    def epi_ops(a):
        ops = []
        for tt in range(2):
            g = a + 16*tt; u = g + 8; e = E + 16*tt
            for hf in range(2):
                r = range(4*hf, 4*hf+4)
                ops += [f'v_mul_f32 v{e+i}, v{C1+tt}, v{g+i}' for i in r]
                ops += [f'v_exp_f32 v{e+i}, v{e+i}' for i in r]
                ops += [f'v_mul_f32 v{e+8+i}, v{g+i}, v{u+i}' for i in r]
                ops += [f'v_fma_f32 v{e+i}, v{e+i}, v{VV+tt}, v{VV+tt}' for i in r]
                ops += [f'v_rcp_f32 v{e+i}, v{e+i}' for i in r]
                ops += [f'v_mul_f32 v{e+8+i}, v{e+8+i}, v{e+i}' for i in r]
            ops += [f'v_cvt_pk_bf16_f32 v{e+i}, v{e+8+2*i}, v{e+9+2*i}' for i in range(4)]
            ops += [f'buffer_store_dwordx4 {vr(e,4)}, v{vST}, {ws}, s{sACT2 if tt else sACT} offen' + ('' if os.environ.get('ACTPLAIN') else ' sc1')]
        ops += [f's_add_u32 s{sACT}, s{sACT}, 512', f's_add_u32 s{sACT2}, s{sACT2}, 512']
        return ops
    def cost(l):
        if l.startswith('v_exp') or l.startswith('v_rcp'): return 8
        if l.startswith('buffer'): return 16
        if l.startswith('s_'): return 2
        return 4
    def body(cur, prevs, dmas, vmwait):
        a = ACC + 32*cur
        ep = []
        for p in prevs: ep += epi_ops(ACC + 32*p)
        X = os.environ.get('K4X', '')
        if 'noepi' in X: ep = [l for l in ep if not l.startswith('v_')]
        if 'nost' in X: ep = [l for l in ep if not l.startswith('buffer')]
        if 'nodma' in X and len(prevs) == 1: dmas = {}
        total = sum(cost(l) for l in ep)
        nslots = 66
        budget = total / nslots
        acc = 0.0; slot = 0
        vm = []
        for ks in range(36):
            if ks == 33:
                k(f's_waitcnt vmcnt({vmwait(vm)})')
                if 'nobar' not in X: k('s_barrier')
            k(rd(ks + PD))
            k(f's_waitcnt lgkmcnt({PD})')
            for tt in range(2):
                c = vr(a+16*tt,16) if ks else '0'
                k(f'v_mfma_f32_32x32x16_bf16 {vr(a+16*tt,16)}, {vr(WF+4*(ks%4),4)}, {hb(ks,tt)}, {c}')
                if tt == 0 and ks in dmas:
                    tag, g = dmas[ks]
                    for l in g: k(l)
                    vm.append(tag)
                elif slot >= 3:
                    acc += budget * (72 / 60)
                    while ep and acc >= cost(ep[0]) * 0.75:
                        l = ep.pop(0); acc -= cost(l); k(l)
                        if l.startswith('buffer'): vm.append('st')
                slot += 1
        for l in ep: k(l)
        nextaddr()
    d = {}
    for i, g in enumerate(dma_list()): d[1 + i] = ('a', g)
    for i, g in enumerate(dma_list()): d[12 + 2*i] = ('b', g)
    body(3, [0, 1], d, lambda vm: len(vm) - 1 - max(i for i, t in enumerate(vm) if t == 'a'))
    def std(last=False): return {2 + 3*i: ('a', g) for i, g in enumerate(dma_list(last))}
    body(0, [2, 3], std(), lambda vm: len(vm))
    k.stamp(3)
    k.code_prefetch('k5_down_kernel', 'code_end', 44, T, T+1, sWV, sT1)
    k(f's_mov_b32 s{sIT}, 2')
    loop = k.label('loop')
    k(f'{loop}:')
    body(1, [0], std(), lambda vm: len(vm))
    k(f's_cmp_eq_u32 s{sIT}, 1')
    k(f's_cselect_b32 s{sW}, s{sPF2}, s{sW}')
    body(0, [1], std(True), lambda vm: len(vm))
    k(f's_sub_u32 s{sIT}, s{sIT}, 1')
    k(f's_cmp_lg_u32 s{sIT}, 0')
    k(f's_cbranch_scc1 {loop}')
    k.stamp(4)
    for l in epi_ops(ACC): k(l)
    k('s_waitcnt vmcnt(0)') if K.prof else None
    k.stamp(5); k.stamp(13, True); k.stamp_flush(ws, sWV)
    k(f'{done}:')
    k('s_endpgm')
    return k.finish(vgpr=232+256, accum=232), (256, 256, K4_LDS)
```

```python
from asmlib import *
from layout import *
from k1 import srd
import os

CH = 36 * 1024
TP = 592
K5_LDS = 3 * CH + 4 * 8 * TP
MSG = 2304

def gen_k5():
    k = K('k5_down_kernel')
    WS, OUT = 12, 16
    (sWV, sS, sTB, sCB, sT0, sT1, sT2, sW, sM0, sA0, sA1, sIT, sQD, sMASK, sH, sO) = range(24, 40)
    vL, vLO, vAO, vR0, vR1, vR2, T = 1, 2, 3, 4, 5, 6, 8
    vHo, vOo, vMo, vTW, vTR = 16, 19, 22, 25, 26
    HR = 32
    MUr = 44
    WF = 48
    ACC = 120
    RX = 192
    done = k.label('done')
    act = lambda ks, t: ar(8*(ks % 12) + 4*t, 4)
    acc = lambda t, c: ACC + 4*(9*t + c)
    wf = lambda ks, c: vr(WF + 36*(ks & 1) + 4*c, 4)
    k('s_cmp_ge_u32 s2, 256')
    k(f's_cbranch_scc1 {done}')
    k.kidx = 4; k.stamp(0); k.stamp(12, True)
    k('s_load_dwordx2 s[4:5], s[0:1], 72')
    k('s_load_dwordx2 s[6:7], s[0:1], 56')
    k(f'v_lshrrev_b32 v{T}, 6, v0')
    k(f'v_and_b32 v{vL}, 63, v0')
    k(f'v_readfirstlane_b32 s{sWV}, v{T}')
    k(f's_and_b32 s{sS}, s2, 3')
    k(f's_and_b32 s{sTB}, s2, 4')
    k(f's_lshl_b32 s{sTB}, s{sTB}, 1')
    k(f's_bfe_u32 s{sT0}, s2, 0x30003')
    k(f's_add_u32 s{sTB}, s{sTB}, s{sT0}')
    k(f's_lshr_b32 s{sCB}, s2, 6')
    k(f's_lshl_b32 s{sQD}, s{sTB}, 2')
    k(f's_add_u32 s{sQD}, s{sQD}, s{sCB}')
    k(f'v_lshlrev_b32 v{vLO}, 4, v{vL}')
    k(f'v_add_u32 v{T}, s{sS}, v{vL}')
    k(f'v_and_b32 v{T}, 3, v{T}')
    k(f'v_and_b32 v{T+1}, 60, v{vL}')
    k(f'v_or_b32 v{T}, v{T}, v{T+1}')
    k(f'v_lshlrev_b32 v{vAO}, 4, v{T}')
    k(f's_lshl_b32 s{sT0}, s{sTB}, 3')
    k(f's_lshl_b32 s{sT1}, s{sWV}, 1')
    k(f's_add_u32 s{sT0}, s{sT0}, s{sT1}')
    k(f's_mul_i32 s{sA0}, s{sT0}, {144*1024}')
    k(f's_mul_i32 s{sT1}, s{sS}, {36*1024}')
    k(f's_add_u32 s{sA0}, s{sA0}, s{sT1}')
    k(f's_add_u32 s{sA0}, s{sA0}, {ACT:#x}')
    k(f's_add_u32 s{sA1}, s{sA0}, {144*1024}')
    k(f's_lshl_b32 s{sT0}, s{sCB}, 2')
    k(f's_add_u32 s{sT0}, s{sT0}, s{sS}')
    k(f's_mul_i32 s{sW}, s{sT0}, {9*CH}')
    k(f's_mul_i32 s{sM0}, s{sWV}, {9*1024}')
    k(f's_add_u32 s{sW}, s{sW}, s{sM0}')
    k(f's_add_u32 s{sW}, s{sW}, {WD:#x}')
    k('s_waitcnt lgkmcnt(0)')
    k.stamp(7)
    srd(k, WS, 4, WS_END)
    ws = sr(WS, 4)
    def dma(st, i):
        out = []
        if i % 4 == 0:
            out.append(f's_add_u32 m0, s{sM0}, {(st % 3)*CH + 1024*i}')
            out.append(f's_add_u32 s{sT1}, s{sW}, {1024*i}')
        out.append(f'buffer_load_dwordx4 v{vLO}, {ws}, s{sT1} offen offset:{1024*(i%4)} lds')
        if i == 8: out.append(f's_add_u32 s{sW}, s{sW}, {CH}')
        return out
    def aload(ks, t):
        out = [f'buffer_load_dwordx4 {act(ks,t)}, v{vAO}, {ws}, s{sA1 if t else sA0} offen offset:{1024*(ks%4)}']
        if ks % 4 == 3: out.append(f's_add_u32 s{sA1 if t else sA0}, s{sA1 if t else sA0}, 4096')
        return out
    issued = []
    def iss(tag, ls):
        for l in ls: k(l)
        issued.append(tag)
    AL = int(os.environ.get('K5AL', '8'))
    for i in range(9): iss(('w', 0), dma(0, i))
    for ks in range(4):
        for t in range(2): iss(('a', ks), aload(ks, t))
    for i in range(9): iss(('w', 1), dma(1, i))
    for ks in range(4, AL):
        for t in range(2): iss(('a', ks), aload(ks, t))
    srd(k, OUT, 6, 2048*1152)
    k(f'v_mov_b32 v{vR0}, v{vLO}')
    k(f'v_add_u32 v{vR1}, {CH}, v{vLO}')
    k(f'v_add_u32 v{vR2}, {2*CH}, v{vLO}')
    for i in range(72): k(f'v_mov_b32 v{ACC+i}, 0')
    def younger(tag):
        return len(issued) - 1 - max(i for i, t in enumerate(issued) if t == tag)
    def rd(ks, c):
        st = ks // 4
        return f'ds_read_b128 {wf(ks,c)}, v{(vR0,vR1,vR2)[st % 3]} offset:{((ks % 4)*9 + c)*1024}'
    k(f's_waitcnt vmcnt({younger(("w",0))})')
    k('s_barrier')
    k.stamp(1)
    for c in range(9): k(rd(0, c))
    FIRSTW = {False: 6, True: 6}
    def kstep(ks, emit=True, extra=None):
        st, j = ks // 4, ks % 4
        out = []
        n = younger(('a', ks))
        bar = j == 3 and st < 8
        if bar: n = min(n, younger(('w', st + 1)))
        nb = n
        n = younger(('a', ks))
        out.append(f's_waitcnt vmcnt({n}) lgkmcnt({FIRSTW[j == 0]})')
        q = []
        if ks + AL < 36:
            for t in range(2): q.append((('a', ks + AL), aload(ks + AL, t)))
        if st + 2 < 9 and j < 3:
            for i in range(3*j, 3*j + 3): q.insert(2*(i - 3*j) if 2*(i-3*j) <= len(q) else len(q), (('w', st + 2), dma(st + 2, i)))
        if extra: q += extra
        vpos = [1, 5, 9, 13, 17] if len(q) > 3 else [1, 7, 13]
        if bar: vpos = [1, 3]
        pos = {vpos[i]: e for i, e in enumerate(q)}
        if bar: rpos = dict(zip([5, 6, 8, 9, 11, 12, 14, 15, 17], range(9)))
        else: rpos = {2*c: c for c in range(9)}
        m = 0
        for c in range(9):
            for t in range(2):
                a = acc(t, c)
                if t == 0 and c in (3, 6) and not bar and ks < 35: out.append('s_waitcnt lgkmcnt(6)')
                if t == 0 and c == 3 and ks == 35: out.append('s_waitcnt lgkmcnt(0)')
                out.append(f'v_mfma_f32_16x16x32_bf16 {vr(a,4)}, {act(ks,t)}, {wf(ks,c)}, {vr(a,4)}')
                if bar and m == 4:
                    out.append(f's_waitcnt vmcnt({younger(("w", st + 1))}) lgkmcnt(0)')
                    out.append('s_barrier')
                if m in rpos and ks < 35: out.append(rd(ks + 1, rpos[m]))
                if m in pos:
                    tag, ls = pos[m]; out += ls; issued.append(tag)
                m += 1
        return out
    it0 = []
    for ks in range(12): it0 += kstep(ks)
    it1 = []
    for ks in range(12, 24): it1 += kstep(ks)
    assert len(it0) == len(it1)
    body = []
    import re
    for a, b in zip(it0, it1):
        if a == b: body.append(a)
        else:
            ma, mb = re.match(r's_waitcnt vmcnt\((\d+)\)(.*)', a), re.match(r's_waitcnt vmcnt\((\d+)\)(.*)', b)
            assert ma and mb and ma.group(2) == mb.group(2), (a, b)
            body.append(f's_waitcnt vmcnt({min(int(ma.group(1)), int(mb.group(1)))}){ma.group(2)}')
    k(f's_mov_b32 s{sIT}, 2')
    loop = k.label('loop')
    k(f'{loop}:')
    for l in body: k(l)
    k(f's_sub_u32 s{sIT}, s{sIT}, 1')
    k(f's_cmp_lg_u32 s{sIT}, 0')
    k(f's_cbranch_scc1 {loop}')
    k.stamp(2)
    k(f's_lshl_b32 s{sT0}, s{sTB}, 2')
    k(f's_add_u32 s{sT0}, s{sT0}, s{sWV}')
    k(f's_mul_i32 s{sH}, s{sT0}, {CH}')
    k(f's_mul_i32 s{sT1}, s{sCB}, {18*512}')
    k(f's_add_u32 s{sH}, s{sH}, s{sT1}')
    k(f's_lshl_b32 s{sT1}, s{sS}, 4')
    k(f's_add_u32 s{sH}, s{sH}, s{sT1}')
    k(f's_add_u32 s{sH}, s{sH}, {HB:#x}')
    k(f's_lshl_b32 s{sT0}, s{sT0}, 5')
    k(f's_add_u32 s{sT0}, s{sT0}, s{sS}')
    k(f's_mul_i32 s{sO}, s{sT0}, 1152')
    k(f's_mul_i32 s{sT1}, s{sCB}, 288')
    k(f's_add_u32 s{sO}, s{sO}, s{sT1}')
    k(f's_lshl_b32 s{sT2}, s{sT0}, 2')
    k(f's_add_u32 s{sT2}, s{sT2}, {MU:#x}')
    k(f's_mul_i32 s{sT0}, s{sWV}, {8*TP}')
    k(f's_add_u32 s{sT0}, s{sT0}, {3*CH}')
    for r in range(3):
        k(f'v_add_u32 v{T}, {64*r}, v{vL}')
        if r == 2: k(f'v_min_u32 v{T}, 143, v{T}')
        k(f'v_mul_u32_u24 v{T+1}, 3641, v{T}')
        k(f'v_lshrrev_b32 v{T+1}, 16, v{T+1}')
        k(f'v_mul_u32_u24 v{T+2}, 18, v{T+1}')
        k(f'v_sub_u32 v{T+2}, v{T}, v{T+2}')
        k(f'v_lshlrev_b32 v{vMo+r}, 4, v{T+1}')
        k(f'v_lshlrev_b32 v{T+3}, 6, v{T+1}')
        k(f'v_lshl_add_u32 v{vHo+r}, v{T+2}, 9, v{T+3}')
        k(f'v_mul_u32_u24 v{T+3}, {4*1152}, v{T+1}')
        k(f'v_lshl_add_u32 v{vOo+r}, v{T+2}, 4, v{T+3}')
        k(f'v_mul_u32_u24 v{T+3}, {TP}, v{T+1}')
        k(f'v_lshl_add_u32 v{T+3}, v{T+2}, 5, v{T+3}')
        k(f'v_add_u32 v{vTR+r}, s{sT0}, v{T+3}')
    k(f'v_lshrrev_b32 v{T}, 4, v{vL}')
    k(f'v_mul_u32_u24 v{T}, {TP}, v{T}')
    k(f'v_and_b32 v{T+1}, 15, v{vL}')
    k(f'v_lshl_add_u32 v{T}, v{T+1}, 2, v{T}')
    k(f'v_add_u32 v{vTW}, s{sT0}, v{T}')
    k(f's_mov_b32 s{sMASK}, 0xffff0000')
    ex = []
    for r in range(3):
        ex.append((('h', r), [f'buffer_load_dwordx4 {vr(HR+4*r,4)}, v{vHo+r}, {ws}, s{sH} offen']))
        ex.append((('h', r), [f'buffer_load_dword v{MUr+r}, v{vMo+r}, {ws}, s{sT2} offen']))
    for ks in range(24, 36):
        for l in kstep(ks, extra=(ex[3*(ks-32):3*(ks-32)+3] if ks in (32, 33) else None)): k(l)
    k.stamp(3)
    k(f'v_lshlrev_b32 v{T}, 2, v{vL}')
    k('s_mov_b32 s44, 0x11111111')
    k('s_mov_b32 s45, 0x11111111')
    for i in range(1, 4):
        b = WF + 12*(i-1)
        for c in range(9): k(f'v_cvt_pk_bf16_f32 v{b+c}, v{acc(0,c)+i}, v{acc(1,c)+i}')
        k(f's_add_u32 s{sT0}, s{sS}, {i}')
        k(f's_and_b32 s{sT0}, s{sT0}, 3')
        k(f's_lshl_b32 s{sT1}, s{sQD}, 2')
        k(f's_add_u32 s{sT0}, s{sT0}, s{sT1}')
        k(f's_lshl_b32 s{40+i}, s{sT0}, 6')
        k(f's_add_u32 s{40+i}, s{40+i}, {FLG + 4*(i-1):#x}')
        k(f's_mul_i32 s{sT0}, s{sT0}, 12')
        k(f's_add_u32 s{sT0}, s{sT0}, s{sWV}')
        k(f's_mul_i32 s{sT0}, s{sT0}, {MSG}')
        k(f's_add_u32 s{sT0}, s{sT0}, {EXC + (i-1)*4*MSG:#x}')
        k(f'buffer_store_dwordx4 {vr(b,4)}, v{vLO}, {ws}, s{sT0} offen sc1')
        k(f'buffer_store_dwordx4 {vr(b+4,4)}, v{vLO}, {ws}, s{sT0} offen offset:1024 sc1')
        for j in range(1, 4): k(f'v_mov_b32_dpp v{b+8+j}, v{b+8} quad_perm:[{j},{j},{j},{j}] row_mask:0xf bank_mask:0xf')
        k(f's_mov_b64 exec, s[44:45]')
        k(f'buffer_store_dwordx4 {vr(b+8,4)}, v{T}, {ws}, s{sT0} offen offset:2048 sc1')
        k(f's_mov_b64 exec, -1')
    k(f's_lshl_b32 s{sT1}, s{sQD}, 2')
    k(f's_add_u32 s{sT1}, s{sT1}, s{sS}')
    k(f's_lshl_b32 s{sT2}, s{sT1}, 6')
    k(f's_add_u32 s{sT2}, s{sT2}, {FLG:#x}')
    k(f's_mul_i32 s{sT1}, s{sT1}, 12')
    k(f's_add_u32 s{sT1}, s{sT1}, s{sWV}')
    k(f's_mul_i32 s{sT1}, s{sT1}, {MSG}')
    k(f's_add_u32 s{sT1}, s{sT1}, {EXC:#x}')
    k(f'v_mov_b32 v{T+1}, 0')
    k(f'v_mov_b32 v{T+2}, 1')
    k('s_waitcnt vmcnt(0)')
    k('s_barrier')
    k.stamp(4)
    nosig = k.label('nosig'); poll = k.label('poll')
    k(f's_cmp_lg_u32 s{sWV}, 0')
    k(f's_cbranch_scc1 {nosig}')
    k('s_mov_b64 exec, 1')
    for i in range(1, 4): k(f'buffer_store_dword v{T+2}, v{T+1}, {ws}, s{40+i} offen sc1')
    k('s_mov_b64 exec, -1')
    k(f'{nosig}:')
    pdone = k.label('pdone')
    k(f's_mov_b32 s{sIT}, 0x40000')
    k(f'{poll}:')
    k(f's_sub_u32 s{sIT}, s{sIT}, 1')
    k(f's_cbranch_scc1 {pdone}')
    k(f'buffer_load_dwordx3 {vr(T+4,3)}, v{T+1}, {ws}, s{sT2} offen sc1')
    k('s_waitcnt vmcnt(0)')
    k(f'v_and_b32 v{T+4}, v{T+4}, v{T+5}')
    k(f'v_and_b32 v{T+4}, v{T+4}, v{T+6}')
    k(f'v_readfirstlane_b32 s{sT0}, v{T+4}')
    k(f's_cmp_eq_u32 s{sT0}, 1')
    k(f's_cbranch_scc0 {poll}')
    k(f'{pdone}:')
    k.stamp(5)
    for i in range(3):
        b = RX + 12*i
        k(f'buffer_load_dwordx4 {vr(b,4)}, v{vLO}, {ws}, s{sT1} offen sc1')
        k(f'buffer_load_dwordx4 {vr(b+4,4)}, v{vLO}, {ws}, s{sT1} offen offset:1024 sc1')
        k(f'buffer_load_dword v{b+8}, v{T}, {ws}, s{sT1} offen offset:2048 sc1')
        k(f's_add_u32 s{sT1}, s{sT1}, {4*MSG}')
    for i in range(3):
        b = RX + 12*i
        k(f's_waitcnt vmcnt({3*(2-i)})')
        for c in range(9):
            k(f'v_lshlrev_b32 v{acc(0,c)+1}, 16, v{b+c}')
            k(f'v_and_b32 v{acc(1,c)+1}, s{sMASK}, v{b+c}')
            k(f'v_add_f32 v{acc(0,c)}, v{acc(0,c)}, v{acc(0,c)+1}')
            k(f'v_add_f32 v{acc(1,c)}, v{acc(1,c)}, v{acc(1,c)+1}')
            if i == 2:
                for t in range(2): k(f'ds_write_b32 v{vTW}, v{acc(t,c)} offset:{4*t*TP + 64*c}')
    k('s_waitcnt lgkmcnt(0)')
    for r in range(3):
        k(f'ds_read_b128 {vr(WF+16*r,4)}, v{vTR+r}')
        k(f'ds_read_b128 {vr(WF+16*r+4,4)}, v{vTR+r} offset:16')
    for r in range(3):
        b = WF + 16*r
        for j in range(4):
            k(f'v_lshlrev_b32 v{b+8+2*j}, 16, v{HR+4*r+j}')
            k(f'v_and_b32 v{b+9+2*j}, s{sMASK}, v{HR+4*r+j}')
        for j in range(8): k(f'v_add_f32 v{b+8+j}, v{b+8+j}, v{MUr+r}')
        k(f's_waitcnt lgkmcnt({2*(2-r)})')
        for j in range(8): k(f'v_add_f32 v{b+j}, v{b+j}, v{b+8+j}')
        for j in range(4): k(f'v_cvt_pk_bf16_f32 v{b+8+j}, v{b+2*j}, v{b+2*j+1}')
        if r == 2: k('s_mov_b64 exec, 0xffff')
        k(f'buffer_store_dwordx4 {vr(b+8,4)}, v{vOo+r}, {sr(OUT,4)}, s{sO} offen')
    k('s_waitcnt vmcnt(0)') if K.prof else None
    k.stamp(6); k.stamp(13, True); k.stamp_flush(ws, sWV)
    k(f'{done}:')
    k('s_endpgm')
    return k.finish(vgpr=228+96, accum=228), (256, 256, K5_LDS)
```

```python
QI  = 0x0
KI  = 0x240000
VT  = 0x480000
VP  = 9344
OI  = 0x740000
HB  = 0x980000
MUX = 0xBC0000
MU  = 0xBC2000
SS  = 0xBC4000
RM  = 0xBD4000
FLG = 0xBE0000
WOP = 0xC00000
WGU = 0xD00000
WD  = 0x1800000
ACT = 0x1E00000
PROF = 0x3000000
EXC = 0x3200000
WS_END = 0x3C00000
OOB = 0x7F000000
WOP_T = 20*1024

import os
if os.environ.get('ALIAS'):
    EXC = WGU
```
